```python
import torch

def _softmax(x, axis=-1):
    return torch.softmax(x, dim=axis)
def _gelu(x):
    return torch.nn.functional.gelu(x, approximate="tanh")
def _silu(x):
    return torch.nn.functional.silu(x)
def _sigmoid(x):
    return torch.sigmoid(x)
def _layernorm(x, axis=-1, eps=1e-5):
    m = x.mean(dim=axis, keepdim=True)
    v = x.var(dim=axis, keepdim=True, unbiased=False)
    return (x - m) / torch.sqrt(v + eps)
def _scatter_add(tgt, idx, src, axis=0):
    return tgt.clone().index_add_(axis, idx, src)
def _segment_sum(src, seg, n):
    out = torch.zeros((n,) + src.shape[1:], dtype=src.dtype)
    return out.index_add_(0, seg, src)
def _pad(x, pw):
    flat = tuple(v for pair in reversed(pw) for v in pair)
    return torch.nn.functional.pad(x, flat)

kernel_name = 'parallel_sum__linear_attn_block__glu_gated_reglu__prompt'

def setup_inputs():

    _w = (lambda a: (lambda t: t.to(torch.bfloat16) if t.is_floating_point() else t)(torch.as_tensor(a)))
    def _A_setup():
        B, S, D = 1, 2048, 448
        return {
            "x": _w((lambda *s: torch.randn(*s, dtype=torch.bfloat16) * 0.05)(B, S, D)),
            "wqkv": _w((lambda *s: torch.randn(*s, dtype=torch.bfloat16) * 0.1)(D, 3 * D)),
            "wo": _w((lambda *s: torch.randn(*s, dtype=torch.bfloat16) * 0.05)(D, D)),
        }
    _A_in = _A_setup()

    def _B_setup():
        B, S, D, F = 1, 2048, 448, 1792
        return {
            "x": _w((lambda *s: torch.randn(*s, dtype=torch.bfloat16) * 0.05)(B, S, D)),
            "W_gate": _w((lambda *s: torch.randn(*s, dtype=torch.bfloat16) * 0.2)(D, F) * (2.0 / D) ** 0.5),
            "W_up": _w((lambda *s: torch.randn(*s, dtype=torch.bfloat16) * 0.2)(D, F) * (2.0 / D) ** 0.5),
            "W_down": _w((lambda *s: torch.randn(*s, dtype=torch.bfloat16) * 0.2)(F, D) * (1.0 / F) ** 0.5),
        }
    _B_in = _B_setup()

    return {
        "A_x": _A_in["x"],
        "A_wqkv": _A_in["wqkv"],
        "A_wo": _A_in["wo"],
        "B_x": _B_in["x"],
        "B_W_gate": _B_in["W_gate"],
        "B_W_up": _B_in["W_up"],
        "B_W_down": _B_in["W_down"],
    }

def reference(A_x, A_wqkv, A_wo, B_x, B_W_gate, B_W_up, B_W_down):
    def _A_ref(x, wqkv, wo):
        B, S, D = x.shape
        H = 16; Dh = D // H
        qkv = (lambda x, *d: x.permute(*d))((x @ wqkv).reshape(B, S, 3, H, Dh), 2, 0, 3, 1, 4)
        q, k, v = qkv[0], qkv[1], qkv[2]
        phi = lambda t: torch.where(t > 0, t + 1, torch.exp(t)) + 1e-6
        pq, pk = phi(q), phi(k)
        kv = torch.einsum("bhsd,bhse->bhde", pk, v)
        z = torch.einsum("bhsd->bhd", pk)
        num = torch.einsum("bhqd,bhde->bhqe", pq, kv)
        den = torch.einsum("bhqd,bhd->bhq", pq, z)[..., None] + 1e-6
        o = num / den
        return (lambda x, *d: x.permute(*d))(o, 0, 2, 1, 3).reshape(B, S, D) @ wo

    def _B_ref(x, W_gate, W_up, W_down):
        gate = torch.einsum("bsd,df->bsf", x, W_gate)
        up = torch.einsum("bsd,df->bsf", x, W_up)
        gate = gate * (lambda x, dt: x.to(dt))(gate > 0, gate.dtype)
        h = gate * up
        return torch.einsum("bsf,fd->bsd", h, W_down)

    x = A_x
    xn = _layernorm(x, axis=-1)
    return x + _A_ref(xn, A_wqkv, A_wo) + _B_ref(xn, B_W_gate, B_W_up, B_W_down)
```

```python
NAME = "parallel_sum__linear_attn_block__glu_gated_reglu__prompt"


class Asm:
    def __init__(self):
        self.L = []
        self.uid = 0

    def __call__(self, s):
        for line in s.split("\n"):
            self.L.append(line)

    def ext(self, lst):
        for s in lst:
            self(s)

    def label(self, name):
        self.L.append(f"{name}:")

    def new_label(self, base):
        self.uid += 1
        return f"L_{base}_{self.uid}"

    def text(self):
        out = []
        for l in self.L:
            l = l.strip()
            if not l:
                continue
            if l.endswith(":") or l.startswith(".") or l.startswith(";"):
                out.append(l)
            else:
                out.append("    " + l)
        return "\n".join(out) + "\n"


def v(i, n=1):
    return f"v{i}" if n == 1 else f"v[{i}:{i+n-1}]"


def a(i, n=1):
    return f"a{i}" if n == 1 else f"a[{i}:{i+n-1}]"


def s(i, n=1):
    return f"s{i}" if n == 1 else f"s[{i}:{i+n-1}]"


def srd(A, sreg, ptr, nbytes, add=0):
    if add:
        A(f"s_add_u32 s{sreg}, s{ptr}, 0x{add:x}")
        A(f"s_addc_u32 s{sreg+1}, s{ptr+1}, 0")
    else:
        A(f"s_mov_b32 s{sreg}, s{ptr}")
        A(f"s_mov_b32 s{sreg+1}, s{ptr+1}")
    A(f"s_and_b32 s{sreg+1}, s{sreg+1}, 0xffff")
    A(f"s_mov_b32 s{sreg+2}, 0x{nbytes:x}")
    A(f"s_mov_b32 s{sreg+3}, 0x20000")


def interleave(mf, fillers, plan=None):
    out = []
    n = len(mf)
    k = 0
    if plan is None:
        plan = [(len(fillers) * (i + 1)) // n - (len(fillers) * i) // n for i in range(n)]
    for i, m in enumerate(mf):
        out.append(m)
        for _ in range(plan[i] if i < len(plan) else 0):
            if k < len(fillers):
                out.append(fillers[k])
                k += 1
    while k < len(fillers):
        out.append(fillers[k])
        k += 1
    return out


def desc(kern, nvgpr=512, accum=256, nsgpr=102):
    return f""".amdhsa_kernel {kern}
  .amdhsa_next_free_vgpr {nvgpr}
  .amdhsa_next_free_sgpr {nsgpr}
  .amdhsa_accum_offset {accum}
  .amdhsa_group_segment_fixed_size 0
  .amdhsa_kernarg_size 80
  .amdhsa_user_sgpr_count 2
  .amdhsa_user_sgpr_kernarg_segment_ptr 1
  .amdhsa_system_sgpr_workgroup_id_x 1
.end_amdhsa_kernel
"""


def khead(kern):
    return f""".globl {kern}
.p2align 8
.type {kern},@function
{kern}:"""
```

```python
from common import *

WSLOT = 20512
NPRE = 3
NSLOT = 4
XBASE = NSLOT * WSLOT
assert XBASE % 128 == 0
XSLOT = 16384
SCR = XBASE + 3 * XSLOT
NEGM = SCR
RSTD = SCR + 512
CSX = SCR + 1024
SPARE = SCR + 3584
KOFF, VOFF, QOFF = 16416, 18464, 8224
UOFF = {"A": 8224, "B": 4128}

VAR = {
    "A0": [("F", 0), ("F", 1), ("F", 2), ("F", 3), ("F", 4)],
    "A1": [("F", 5), ("F", 6), ("F", 7), ("K", 0), ("V", 0)],
    "B0": [("F", 0), ("F", 1), ("Q", 0), ("Q", 1), ("Q", 2)],
    "B1": [("F", 2), ("F", 3), ("Q", 3), ("K", 0), ("V", 0)],
}

ACT_OFF = 0
ACT_BYTES = 64 * 144 * 1024
KVP_OFF = 0x1000000
KVP_BYTES = 16 * 32 * 4096
KVF_OFF = 0x1400000
KVF_BYTES = 16 * 2 * 1024

FLG_OFF = 0x1500000
FLG_BYTES = 0x4000
FLGF = 0x1000
EPOCH = 0x2000
FUSED = False
NMAIN = 11

sX, sQKV, sG, sU, sWS = 4, 6, 8, 10, 12
SRD_GU, SRD_QKV, SRD_X, SRD_ACT, SRD_KVP = 16, 20, 24, 28, 32
sR, sC, sW, sRH, sCH = 36, 37, 38, 39, 40
sDlX, sOffGU, sOffQ, sOffX = 41, 42, 43, 44
sSlotW, sSlotX, sMask = 45, 46, 47
sT0, sT1, sT2, sT3 = 48, 49, 50, 51
sL28 = 52
sLO = 54
sMo = 56
sCnt, sD, sDX, sC4, sC6, sRot = 63, 64, 65, 66, 67, 68
sHKV, sTb, sHQ = 69, 70, 71
sWSL, sNEGW, sNEGX = 72, 73, 74
sOffW2, sMT, sNT, sTag = 3, 14, 15, 75
SRD_WD = 76
sTW, sTX, sW5120, sTmpW2 = 80, 81, 82, 83
sWOp, sOUTp = 98, 100
SRD_FLG = 16
vW2pat, vEpoch = 15, 22

vTid, vLane = 0, 1
vDMA = 8
vF1, vF2, vN1, vN2, vX1, vX2 = 16, 17, 18, 19, 20, 21
vSum0, vSum1, vSq0, vSq1 = 24, 25, 26, 27
vU = 28
vXF = 32
vE = 48
vACC = 96
aW = 0
aCS = 40
aSEL = 60

OPT = {"probe": False, "nobar": False, "nokv": False, "nox": False, "nogu": False, "nodma": False, "nomfma": False, "nostats": False, "nolds": False, "nom16": False, "norot": False}


def acc(t, lt):
    return vACC + 16 * (2 * t + lt)


def xf(b, lt):
    return vXF + 8 * b + 4 * lt


def wf(b, t):
    return aW + 20 * b + 4 * t


def tile_addr(var, t, typ):
    kind, i = VAR[var][t]
    F = vF1 if typ == 1 else vF2
    N = vN1 if typ == 1 else vN2
    if kind == "F":
        return F, 2048 * (i >> 1) + 32 * (i & 1)
    if kind == "Q":
        return N, QOFF + 2048 * i
    return N, (KOFF if kind == "K" else VOFF)


def swapped(var, t):
    return VAR[var][t][0] in "KV"


def uses_n(var):
    return any(k != "F" for k, _ in VAR[var])


def frag_reads(var, buf, typ):
    X = vX1 if typ == 1 else vX2
    R = []
    R.append(f"ds_read_b128 {v(xf(buf,0),4)}, v{X}")
    R.append(f"ds_read_b128 {v(xf(buf,1),4)}, v{X} offset:4096")
    for t in range(5):
        reg, imm = tile_addr(var, t, typ)
        R.append(f"ds_read_b64_tr_b16 {a(wf(buf,t),2)}, v{reg} offset:{imm}")
        R.append(f"ds_read_b64_tr_b16 {a(wf(buf,t)+2,2)}, v{reg} offset:{imm+256}")
    return R


def addr_updates(var, typ):
    F, N, X = (vF1, vN1, vX1) if typ == 1 else (vF2, vN2, vX2)
    U = [f"v_add_u32 v{F}, s{sD}, v{F}"]
    if uses_n(var):
        U.append(f"v_add_u32 v{N}, s{sD}, v{N}")
    U.append(f"v_xad_u32 v{X}, v{X}, 64, s{sDX}")
    return U


def mfmas(var, buf):
    M = []
    for t in range(5):
        for lt in range(2):
            A_ = a(wf(buf, t), 4)
            B_ = v(xf(buf, lt), 4)
            if swapped(var, t):
                A_, B_ = B_, A_
            D = v(acc(t, lt), 16)
            M.append(f"v_mfma_f32_32x32x16_bf16 {D}, {A_}, {B_}, {D}")
    return M


def mfma16(buf):
    return [f"v_mfma_f32_16x16x32_bf16 {a(aCS+4*t,4)}, {a(aSEL,4)}, {a(wf(buf,t),4)}, {a(aCS+4*t,4)}" for t in range(5)]


def stats(ch, buf):
    r0 = xf(buf, ch)
    S = []
    for i in range(4):
        lo, hi = vU + 2 * (i & 1), vU + 2 * (i & 1) + 1
        S.append(f"v_lshlrev_b32 v{lo}, 16, v{r0+i}")
        S.append(f"v_and_b32 v{hi}, s{sMask}, v{r0+i}")
        S.append(f"v_add_f32 v{vSum0}, v{vSum0}, v{lo}")
        S.append(f"v_add_f32 v{vSum1}, v{vSum1}, v{hi}")
        S.append(f"v_fmac_f32 v{vSq0}, v{lo}, v{lo}")
        S.append(f"v_fmac_f32 v{vSq1}, v{hi}, v{hi}")
    return S


UNITS = {
    "A0": [("GU", 0, 0), ("GU", 0, 1), ("GU", 0, 2), ("GU", 0, 3), ("GU", 1, 0), ("GU", 1, 1), ("GU", 1, 2)],
    "A1": [("X", 0), ("X", 1), ("X", 2), ("X", 3), ("GU", 1, 3), ("KV", 0), ("KV", 1)],
    "B0": [("GU", 0, 0), ("GU", 0, 1), ("GU", 1, 0), ("GU", 1, 1), ("Q", 0), ("Q", 1), ("Q", 2)],
    "B1": [("X", 0), ("X", 1), ("X", 2), ("X", 3), ("Q", 3), ("KV", 0), ("KV", 1)],
}


def dma_unit(var, u):
    kind = UNITS[var][u][0]
    base = sSlotX if kind == "X" else sSlotW
    srd_, so = {"GU": (SRD_GU, sOffGU), "Q": (SRD_QKV, sOffQ), "KV": (SRD_QKV, sOffQ), "X": (SRD_X, sOffX)}[kind]
    m = f"s_add_u32 m0, s{base}, s{sMo+u}"
    l = f"buffer_load_dwordx4 v{vDMA+u}, {s(srd_,4)}, s{so} offen lds"
    return m, l


def adv_x():
    return [f"s_sub_u32 s{sDlX}, 128, s{sDlX}",
            f"s_add_u32 s{sOffX}, s{sOffX}, s{sDlX}\ns_cmp_eq_u32 s{sOffX}, 896\ns_cselect_b32 s{sOffX}, 0, s{sOffX}",
            f"s_add_u32 s{sSlotX}, s{sSlotX}, 8192\ns_cmp_eq_u32 s{sSlotX}, {XBASE+3*XSLOT}\ns_cselect_b32 s{sSlotX}, {XBASE}, s{sSlotX}"]


def adv(var):
    kinds = {u[0] for u in UNITS[var]}
    return (adv_x() if "X" in kinds else []) + adv_w(var)


def adv_w(var):
    kinds = {u[0] for u in UNITS[var]}
    L = []
    if "GU" in kinds:
        L.append(f"s_add_u32 s{sOffGU}, s{sOffGU}, {32*3584}\ns_cmp_eq_u32 s{sOffGU}, {448*3584}\ns_cselect_b32 s{sOffGU}, 0, s{sOffGU}")
    if "Q" in kinds or "KV" in kinds:
        L.append(f"s_add_u32 s{sOffQ}, s{sOffQ}, {32*2688}\ns_cmp_eq_u32 s{sOffQ}, {448*2688}\ns_cselect_b32 s{sOffQ}, 0, s{sOffQ}")
    L.append(f"s_add_u32 s{sSlotW}, s{sSlotW}, {WSLOT}\ns_cmp_eq_u32 s{sSlotW}, {NSLOT*WSLOT}\ns_cselect_b32 s{sSlotW}, 0, s{sSlotW}")
    return L


def prologue_common(A, exit_label, stamp=None):
    A(f"s_cmp_ge_u32 s2, 256")
    A(f"s_cbranch_scc1 {exit_label}")
    A(f"s_load_dwordx4 {s(sX,4)}, s[0:1], 0")
    A(f"s_load_dwordx4 {s(sG,4)}, s[0:1], 32")
    A(f"s_load_dwordx2 {s(sWS,2)}, s[0:1], 72")
    if FUSED:
        A(f"s_load_dwordx4 {s(SRD_WD,4)}, s[0:1], 48")
        A(f"s_load_dwordx2 {s(sWOp,2)}, s[0:1], 16")
    if stamp:
        stamp(A, 0)
        stamp.real(A, 6)
    A(f"v_and_b32 v{vLane}, 63, v{vTid}")
    A(f"v_lshrrev_b32 v2, 6, v{vTid}")
    A(f"s_and_b32 s{sT0}, s2, 1")
    A(f"s_lshl_b32 s{sT0}, s{sT0}, 3")
    A(f"s_bfe_u32 s{sT1}, s2, 0x30003")
    A(f"s_add_u32 s{sR}, s{sT0}, s{sT1}")
    A(f"v_readfirstlane_b32 s{sW}, v2")
    A(f"s_bfe_u32 s{sT0}, s2, 0x20001")
    A(f"s_lshl_b32 s{sT0}, s{sT0}, 2")
    A(f"s_lshr_b32 s{sT2}, s2, 6")
    A(f"s_add_u32 s{sC}, s{sT0}, s{sT2}")
    A(f"s_lshr_b32 s{sRH}, s{sW}, 1")
    A(f"s_and_b32 s{sCH}, s{sW}, 1")
    A(f"s_mov_b32 s{sMask}, 0xffff0000")
    if OPT["norot"]:
        A(f"s_mov_b32 s{sRot}, 0")
    else:
        A(f"s_lshl_b32 s{sT2}, s{sT2}, 1")
        A(f"s_add_u32 s{sRot}, s{sT1}, s{sT2}")
        A(f"s_cmp_ge_u32 s{sRot}, 7")
        A(f"s_cselect_b32 s{sT0}, 7, 0")
        A(f"s_sub_u32 s{sRot}, s{sRot}, s{sT0}")

    A(f"v_lshrrev_b32 v2, 2, v{vLane}")
    A(f"v_and_b32 v3, 3, v{vLane}")
    A(f"v_lshlrev_b32 v3, 4, v3")
    A(f"v_mul_u32_u24 v4, 3584, v2")
    A(f"v_add_u32 v4, v4, v3")
    A(f"v_mul_u32_u24 v5, 2688, v2")
    A(f"v_add_u32 v5, v5, v3")


def fused_setup(A):
    A(f"s_mov_b32 s{sOUTp}, s{SRD_WD+2}")
    A(f"s_mov_b32 s{sOUTp+1}, s{SRD_WD+3}")
    srd(A, SRD_WD, SRD_WD, 1792 * 896)
    A(f"s_and_b32 s{sT0}, s2, 7")
    A(f"s_lshl_b32 s{sT0}, s{sT0}, 2")
    A(f"s_bfe_u32 s{sT1}, s2, 0x20003")
    A(f"s_add_u32 s{sMT}, s{sT0}, s{sT1}")
    A(f"s_lshr_b32 s{sNT}, s2, 5")
    A(f"v_lshrrev_b32 v2, 3, v{vLane}")
    A(f"v_mul_u32_u24 v3, 896, v2")
    A(f"v_bfe_u32 v4, v{vLane}, 4, 1")
    A(f"v_lshlrev_b32 v4, 2, v4")
    A(f"v_and_b32 v5, 7, v{vLane}")
    A(f"v_xor_b32 v5, v5, v4")
    A(f"v_lshlrev_b32 v5, 4, v5")
    A(f"s_lshl_b32 s{sT0}, s{sNT}, 7")
    A(f"v_add3_u32 v{vW2pat}, v3, v5, s{sT0}")
    A(f"s_mul_i32 s{sOffW2}, s{sW}, {28*16*896}")
    A(f"s_mul_i32 s{sW5120}, s{sW}, 5120")
    A(f"s_add_u32 s{sTW}, s{sW5120}, {2*WSLOT}")
    A(f"s_lshl_b32 s{sTX}, s{sW}, 11")
    A(f"s_add_u32 s{sTX}, s{sTX}, {XBASE + 3*8192}")


def tail_dma(u):
    if u < 5:
        m = f"s_add_u32 m0, s{sTW}, {1024*u}"
    else:
        m = f"s_add_u32 m0, s{sTX}, {1024*(u-5)}"
    m += f"\ns_add_u32 s{sTmpW2}, s{sOffW2}, {u*7168}"
    l = f"buffer_load_dwordx4 v{vW2pat}, {s(SRD_WD,4)}, s{sTmpW2} offen lds"
    return m, l


def tail_adv():
    return [f"s_add_u32 s{sTW}, s{sTW}, {WSLOT}\ns_cmp_eq_u32 s{sCnt}, {NMAIN+2}\ns_cselect_b32 s{sTW}, s{sW5120}, s{sTW}",
            f"s_add_u32 s{sTX}, s{sTX}, 8192",
            f"s_add_u32 s{sOffW2}, s{sOffW2}, {7*7168}"]


def prologue_var(A, var, stamp=None):
    typ, ch = var[0], int(var[1])
    if typ == "A":
        A(f"s_lshl_b32 s{sTb}, s{sC}, 3")
        A(f"s_lshl_b32 s{sT2}, s{sC}, 8")
        A(f"s_lshl_b32 s{sT0}, s{sC}, 1")
        A(f"s_sub_u32 s{sT0}, s{sT0}, 7")
        A(f"s_cmp_lt_u32 s{sC}, 8")
        A(f"s_cselect_b32 s{sHKV}, s{sC}, s{sT0}")
        A(f"s_mov_b32 s{sHQ}, 0")
    else:
        A(f"s_sub_u32 s{sT0}, s{sC}, 12")
        A(f"s_lshl_b32 s{sTb}, s{sT0}, 2")
        A(f"s_add_u32 s{sTb}, s{sTb}, 96")
        A(f"s_lshl_b32 s{sT2}, s{sT0}, 7")
        A(f"s_add_u32 s{sT2}, s{sT2}, 3072")
        A(f"s_lshl_b32 s{sHKV}, s{sT0}, 1")
        A(f"s_add_u32 s{sHKV}, s{sHKV}, 8")
        A(f"s_lshl_b32 s{sHQ}, s{sT0}, 2")
    units = UNITS[var]
    kinds = {u[0] for u in units}
    if "X" in kinds:
        A(f"v_lshrrev_b32 v6, 3, v{vLane}")
        A(f"v_mul_u32_u24 v6, 896, v6")
        A(f"s_mul_i32 s{sT0}, s{sR}, {128*896}")
        A(f"s_mul_i32 s{sT1}, s{sRH}, {32*896}")
        A(f"s_add_u32 s{sT0}, s{sT0}, s{sT1}")
        A(f"v_add_u32 v6, s{sT0}, v6")
        A(f"v_lshrrev_b32 v7, 4, v{vLane}")
        A(f"v_xor_b32 v7, v7, v{vLane}")
        A(f"v_and_b32 v7, 7, v7")
        A(f"v_lshlrev_b32 v7, 4, v7")
    for u, un in enumerate(units):
        d = vDMA + u
        if un[0] == "GU":
            _, b, p = un
            A(f"s_add_u32 s{sT0}, s{sT2}, {64*p + 16*3584*b}")
            A(f"v_add_u32 v{d}, s{sT0}, v4")
            A(f"s_mul_i32 s{sMo+u}, s{sRH}, {UOFF[typ]}")
            A(f"s_add_u32 s{sMo+u}, s{sMo+u}, {2048*p + 1024*b}")
        elif un[0] == "Q":
            q = un[1]
            A(f"s_add_u32 s{sT0}, s{sHQ}, {q}")
            A(f"s_mul_i32 s{sT0}, s{sT0}, 56")
            A(f"s_mul_i32 s{sT1}, s{sRH}, {16*2688}")
            A(f"s_add_u32 s{sT0}, s{sT0}, s{sT1}")
            A(f"v_add_u32 v{d}, s{sT0}, v5")
            A(f"s_lshl_b32 s{sMo+u}, s{sRH}, 10")
            A(f"s_add_u32 s{sMo+u}, s{sMo+u}, {QOFF + 2048*q}")
        elif un[0] == "KV":
            b = un[1]
            A(f"s_mul_i32 s{sT0}, s{sHKV}, 56")
            A(f"s_mul_i32 s{sT1}, s{sRH}, 896")
            A(f"s_add_u32 s{sT0}, s{sT0}, s{sT1}")
            A(f"s_add_u32 s{sT0}, s{sT0}, {896 + 16*2688*b}")
            A(f"v_add_u32 v{d}, s{sT0}, v5")
            A(f"s_lshl_b32 s{sMo+u}, s{sRH}, 11")
            A(f"s_add_u32 s{sMo+u}, s{sMo+u}, {KOFF + 1024*b}")
        else:
            uu = un[1]
            if uu & 1:
                A(f"v_xor_b32 v{d}, 64, v7")
            else:
                A(f"v_mov_b32 v{d}, v7")
            A(f"v_add_u32 v{d}, v{d}, v6")
            if uu:
                A(f"v_add_u32 v{d}, {uu*8*896}, v{d}")
            A(f"s_lshl_b32 s{sMo+u}, s{sRH}, 12")
            A(f"s_add_u32 s{sMo+u}, s{sMo+u}, {1024*uu}")
    A(f"s_mov_b32 s{sSlotW}, 0")
    A(f"s_mov_b32 s{sSlotX}, {XBASE}")
    A(f"s_mul_i32 s{sOffGU}, s{sRot}, {64*3584}")
    A(f"s_mul_i32 s{sOffQ}, s{sRot}, {64*2688}")
    A(f"s_lshl_b32 s{sOffX}, s{sRot}, 7")
    A(f"s_mov_b32 s{sDlX}, {(128 - 64*896) & 0xffffffff}")
    A("s_waitcnt lgkmcnt(0)")
    if "GU" in kinds:
        lab_u, lab_d = A.new_label("wu"), A.new_label("wd")
        A(f"s_cmp_eq_u32 s{sRH}, 1")
        A(f"s_cselect_b32 s{sG}, s{sU}, s{sG}")
        A(f"s_cselect_b32 s{sG+1}, s{sU+1}, s{sG+1}")
        srd(A, SRD_GU, sG, 448 * 3584)
    if "X" in kinds:
        srd(A, SRD_X, sX, 2048 * 896)
        for u in range(4):
            m, l = dma_unit(var, u)
            A(m)
            A("s_nop 0")
            A(l)
        for it in adv_x():
            A(it)
    if "Q" in kinds or "KV" in kinds:
        srd(A, SRD_QKV, sQKV, 448 * 2688)
    if stamp:
        stamp(A, 8)
    zero = [f"v_mov_b32 v{vACC+i}, 0" for i in range(160)] + [f"v_accvgpr_write_b32 a{aCS+i}, 0" for i in range(20)]
    zero += [f"v_mov_b32 v{r}, 0" for r in (vSum0, vSum1, vSq0, vSq1)]
    def group(st):
        for u in range(7):
            m, l = dma_unit(var, u)
            A(m)
            A(zero.pop() if (st == 1 and zero) else "s_nop 0")
            A(l)
            if st == 1:
                for _ in range(3):
                    A(zero.pop())
        if st < NPRE - 1 or ch == 0:
            for it in adv(var):
                A(it)
        else:
            for it in adv_x():
                A(it)
    for st in range(NPRE - 1):
        group(st)
        if OPT["probe"] and st == 0:
            stamp(A, 5)
            A("s_waitcnt vmcnt(0)")
            stamp(A, 4)
    if stamp:
        stamp(A, 9)
    srd(A, SRD_ACT, sWS, ACT_BYTES, ACT_OFF)
    srd(A, SRD_KVP, sWS, KVP_BYTES, KVP_OFF)
    if FUSED:
        fused_setup(A)
    A(f"v_lshrrev_b32 v2, 5, v{vLane}")
    A(f"v_lshlrev_b32 v2, 3, v2")
    A(f"v_bfe_u32 v5, v{vLane}, 2, 2")
    A(f"v_add_u32 v2, v2, v5")
    A(f"v_bfe_u32 v3, v{vLane}, 4, 1")
    A(f"v_and_b32 v4, 3, v{vLane}")
    A(f"v_lshlrev_b32 v4, 3, v4")
    A(f"s_lshl_b32 s{sT0}, s{sRH}, 10")
    A(f"s_sub_u32 s{sT1}, 1024, s{sT0}")
    A(f"v_lshl_add_u32 v6, v2, 6, v4")
    A(f"v_mul_u32_u24 v7, {UOFF[typ]}, v3")
    A(f"v_add3_u32 v{vF1}, v6, v7, s{sT0}")
    A(f"v_add3_u32 v{vF2}, v6, v7, s{sT1}")
    A(f"v_lshlrev_b32 v7, 5, v3")
    A(f"v_add3_u32 v{vN1}, v6, v7, s{sT0}")
    A(f"v_add3_u32 v{vN2}, v6, v7, s{sT1}")
    A(f"v_and_b32 v6, 31, v{vLane}")
    A(f"v_lshlrev_b32 v6, 7, v6")
    A(f"s_lshl_b32 s{sT0}, s{sRH}, 13")
    A(f"s_add_u32 s{sT0}, s{sT0}, {XBASE}")
    A(f"v_lshrrev_b32 v7, 5, v{vLane}")
    A(f"v_bfe_u32 v5, v{vLane}, 1, 3")
    A(f"v_xor_b32 v7, v7, v5")
    A(f"s_lshl_b32 s{sT1}, s{sRH}, 1")
    A(f"v_xor_b32 v3, s{sT1}, v7")
    A(f"v_lshlrev_b32 v3, 4, v3")
    A(f"v_add3_u32 v{vX1}, v6, v3, s{sT0}")
    A(f"v_xor_b32 v3, 32, v3")
    A(f"v_add3_u32 v{vX2}, v6, v3, s{sT0}")
    A(f"v_lshrrev_b32 v2, 2, v{vLane}")
    A(f"v_lshrrev_b32 v3, 4, v{vLane}")
    A(f"v_xor_b32 v2, v2, v3")
    A(f"v_and_b32 v2, 1, v2")
    A(f"v_cmp_eq_u32 vcc, 0, v2")
    A(f"v_mov_b32 v3, 0x3f803f80")
    A(f"v_mov_b32 v4, 0")
    A(f"v_cndmask_b32 v3, v4, v3, vcc")
    for i in range(4):
        A(f"v_accvgpr_write_b32 a{aSEL+i}, v3")
    for z in zero:
        A(z)
    A(f"s_mov_b32 s{sWSL}, {WSLOT}")
    A(f"s_mov_b32 s{sNEGW}, {(-(NSLOT-1)*WSLOT) & 0xffffffff}")
    A(f"s_mov_b32 s{sNEGX}, {(-2*XSLOT) & 0xffffffff}")
    A(f"s_mov_b32 s{sD}, {WSLOT}")
    A(f"s_mov_b32 s{sDX}, 0")
    A(f"s_mov_b32 s{sC4}, 0")
    A(f"s_mov_b32 s{sC6}, 0")
    A(f"s_mov_b32 s{sCnt}, 0")
    if stamp:
        stamp(A, 11)
    group(NPRE - 1)
    if FUSED:
        srd(A, 48, sWS, FLG_BYTES, FLG_OFF)
        A(f"v_mov_b32 v2, {EPOCH}")
        A(f"buffer_load_dword v{vEpoch}, v2, s[48:51], 0 offen sc1")


def filt(lst):
    out = []
    for item in lst:
        for l in item.split("\n"):
            if OPT["nodma"] and l.startswith("buffer_load"): continue
            if OPT["nokv"] and l.startswith("buffer_load") and f"s[{SRD_QKV}:" in l: continue
            if OPT["nox"] and l.startswith("buffer_load") and f"s[{SRD_X}:" in l: continue
            if OPT["nogu"] and l.startswith("buffer_load") and f"s[{SRD_GU}:" in l: continue
            if OPT["nomfma"] and l.startswith("v_mfma"): continue
            if OPT["nom16"] and l.startswith("v_mfma_f32_16x16"): continue
            if OPT["nolds"] and l.startswith("ds_read"): continue
            if OPT["nostats"] and (l.startswith("v_lshlrev_b32 v2") or l.startswith("v_lshlrev_b32 v3") or l.startswith("v_and_b32") or l.startswith("v_add_f32") or l.startswith("v_fmac")): continue
            out.append(l)
    return out


def delta_calc():
    return [
        f"s_add_u32 s{sC4}, s{sC4}, 1",
        f"s_and_b32 s{sC4}, s{sC4}, {NSLOT-1}",
        f"s_cmp_eq_u32 s{sC4}, {NSLOT-1}\ns_cselect_b32 s{sD}, s{sNEGW}, s{sWSL}",
        f"s_add_u32 s{sC6}, s{sC6}, 1",
        f"s_cmp_eq_u32 s{sC6}, 6\ns_cselect_b32 s{sC6}, 0, s{sC6}",
        f"s_and_b32 s{sT3}, s{sC6}, 1",
        f"s_lshl_b32 s{sDX}, s{sT3}, 14",
        f"s_cmp_eq_u32 s{sC6}, 5\ns_cselect_b32 s{sDX}, s{sNEGX}, s{sDX}",
    ]


def nins(item):
    return len(item.split("\n"))


def sched(M, caps, lds, ldsplan, dma, flow, pin=None):
    n = len(M)
    slots = [[] for _ in range(n)]
    k = 0
    for i, c in enumerate(ldsplan):
        for _ in range(c):
            if k < len(lds):
                slots[i].append(lds[k]); k += 1
    assert k == len(lds)
    for i, items in (pin or {}).items():
        slots[i] += items
    used = [sum(nins(f) for f in slots[i]) + (nins(dma[i][0]) + 1 if i in dma else 0) for i in range(n)]
    rem = [max(0, caps[i] - used[i]) for i in range(n)]
    tot_rem = sum(rem)
    tot_flow = sum(nins(f) for f in flow)
    scale = min(1.0, tot_flow / max(1, tot_rem))
    cum_cap = 0.0
    placed = 0
    fi = 0
    for i in range(n):
        cum_cap += rem[i] * scale
        while fi < len(flow) and placed + nins(flow[fi]) / 2.0 <= cum_cap + 1e-9:
            slots[i].append(flow[fi]); placed += nins(flow[fi]); fi += 1
    while fi < len(flow):
        slots[n - 1].append(flow[fi]); fi += 1
    out = []
    for i in range(n):
        out.append(M[i])
        body = list(slots[i])
        if i in dma:
            m, l = dma[i]
            if not body:
                body = ["s_nop 0"]
            body = [m] + body + [l]
        out += body
    return out


DMA1 = {0: [0, 3, 6], 1: [2, 5, 8]}
DMA2 = {0: [0, 3, 7, 11], 1: [1, 5, 9, 13]}
LDSP1 = [2, 2, 2, 2, 2, 2]
LDSP2 = [2, 2, 1, 2, 2, 1, 2]


def stage(A, var, dma_fn, last_items=(), tail=False):
    ch = int(var[1])
    n1 = len(DMA1[ch])
    A("s_waitcnt lgkmcnt(0)")
    M = mfmas(var, 0)
    dma = {sl: dma_fn(u) for u, sl in enumerate(DMA1[ch])}
    flow = (adv_w(var) if (ch == 1 and not tail) else []) + stats(ch, 0) + addr_updates(var, 2)
    seq = sched(M, [7] * 10, frag_reads(var, 1, 2), OPTS["lp1"], dma, flow)
    A.ext(filt(seq))
    vm = 7 + n1
    if OPT["nokv"] or OPT["nox"] or OPT["nogu"]:
        vm = 0
    A(f"s_waitcnt vmcnt({vm}) lgkmcnt(0)" if not OPT["nodma"] else "s_waitcnt lgkmcnt(0)")
    if not OPT["nobar"]:
        A("s_barrier")
    M = mfmas(var, 1)
    M16 = mfma16(1)
    seq = []
    caps = []
    for i in range(10):
        seq.append(M[i]); caps.append(7)
        if i % 2 == 1:
            seq.append(M16[i // 2]); caps.append(3)
    dma = {sl: dma_fn(n1 + u) for u, sl in enumerate(DMA2[ch])}
    flow = delta_calc() + stats(ch, 1) + addr_updates(var, 1)
    pin = {}
    def addpin(sl, items):
        pin.setdefault(min(sl, 14), []).extend(items)
    if tail:
        L = DMA2[ch][-1]
        addpin(L + 1, list(last_items) + tail_adv())
        last_items = ()
    elif ch == 0:
        aw = adv_w(var)
        L = DMA2[ch][-1]
        assert L < 14
        addpin(L + 1, aw[:2]); addpin(L + 2, aw[2:])
    else:
        ax = adv_x()
        L = DMA2[ch][3 - n1]
        addpin(L + 1, ax[:2]); addpin(L + 2, ax[2:])
        assert L + 2 < 14
    addpin(14, list(last_items))
    out = sched(seq, caps, frag_reads(var, 0, 1), OPTS["lp2"], dma, flow, pin)
    A.ext(filt(out))


OPTS = {"lp1": LDSP1, "lp2": LDSP2}


def loop(A, var, stamp=None):
    ch = int(var[1])
    if stamp:
        stamp(A, 10)
    A(f"s_waitcnt vmcnt({7*(NPRE-1)})")
    A("s_barrier")
    if stamp:
        stamp(A, 1)
    A.ext(frag_reads(var, 0, 1))
    A(f"v_add_u32 v{vF1}, {WSLOT}, v{vF1}")
    if uses_n(var):
        A(f"v_add_u32 v{vN1}, {WSLOT}, v{vN1}")
    A(f"v_xor_b32 v{vX1}, 64, v{vX1}")
    lab = A.new_label(f"p1loop{var}")
    A.label(lab)
    stage(A, var, lambda u: dma_unit(var, u), [f"s_add_u32 s{sCnt}, s{sCnt}, 1"])
    A(f"s_cmp_lt_u32 s{sCnt}, {NMAIN if FUSED else 14}")
    A(f"s_cbranch_scc1 {lab}")
    if FUSED:
        lab = A.new_label(f"p1tail{var}")
        A.label(lab)
        stage(A, var, tail_dma, [f"s_add_u32 s{sCnt}, s{sCnt}, 1"], tail=True)
        A(f"s_cmp_lt_u32 s{sCnt}, 14")
        A(f"s_cbranch_scc1 {lab}")


def bf16_round(A, dst, src):
    A(f"v_cvt_pk_bf16_f32 v{dst}, v{src}, v{src}")
    A(f"v_and_b32 v{dst}, s{sMask}, v{dst}")


def epi_stats(A, var):
    t0, t1, t2, t3 = vE, vE + 1, vE + 2, vE + 3
    A(f"v_add_f32 v{vSum0}, v{vSum0}, v{vSum1}")
    A(f"v_add_f32 v{vSq0}, v{vSq0}, v{vSq1}")
    A(f"v_mov_b32 v{vSum1}, v{vSum0}")
    A(f"v_mov_b32 v{vSq1}, v{vSq0}")
    for t in range(5):
        A(f"v_accvgpr_read_b32 v{vE+8+t}, a{aCS+4*t}")
    A(f"v_permlane32_swap_b32 v{vSum0}, v{vSum1}")
    A(f"v_permlane32_swap_b32 v{vSq0}, v{vSq1}")
    A(f"s_mul_i32 s{sT0}, s{sW}, 640")
    A(f"v_and_b32 v{t3}, 31, v{vLane}")
    A(f"v_lshlrev_b32 v{t3}, 2, v{t3}")
    A(f"v_add_u32 v{t3}, {CSX}, v{t3}")
    A(f"v_add_u32 v{t2}, s{sT0}, v{t3}")
    for t in range(5):
        A(f"ds_write_b32 v{t2}, v{vE+8+t} offset:{128*t}")
    A(f"v_add_f32 v{vSum0}, v{vSum0}, v{vSum1}")
    A(f"v_add_f32 v{vSq0}, v{vSq0}, v{vSq1}")
    inv = "0x3b124925"
    A(f"v_mul_f32 v{t0}, {inv}, v{vSum0}")
    A(f"v_mul_f32 v{t1}, {inv}, v{vSq0}")
    A(f"v_fma_f32 v{t1}, -v{t0}, v{t0}, v{t1}")
    A(f"v_max_f32 v{t1}, 0, v{t1}")
    bf16_round(A, t1, t1)
    A(f"v_add_f32 v{t1}, 0x3727c5ac, v{t1}")
    bf16_round(A, t1, t1)
    A(f"v_sqrt_f32 v{t1}, v{t1}")
    A(f"v_xor_b32 v{t0}, 0x80000000, v{t0}")
    bf16_round(A, t1, t1)
    A(f"v_rcp_f32 v{t1}, v{t1}")
    A(f"v_cvt_pk_bf16_f32 v{t0}, v{t0}, v{t0}")
    A(f"s_lshl_b32 s{sT0}, s{sW}, 7")
    A(f"v_and_b32 v{t2}, 31, v{vLane}")
    A(f"v_lshlrev_b32 v{t2}, 2, v{t2}")
    A(f"v_add_u32 v{t2}, s{sT0}, v{t2}")
    A(f"v_add_u32 v{t2}, {NEGM}, v{t2}")
    A(f"ds_write_b32 v{t2}, v{t0}")
    A(f"ds_write_b32 v{t2}, v{t1} offset:{RSTD-NEGM}")
    A(f"s_xor_b32 s{sT0}, s{sW}, 2")
    A(f"s_mul_i32 s{sT0}, s{sT0}, 640")
    A(f"v_add_u32 v{t3}, s{sT0}, v{t3}")
    A(f"s_lshl_b32 s{sT0}, s{sRH}, 8")
    A(f"v_and_b32 v{t2}, 31, v{vLane}")
    A(f"v_lshlrev_b32 v{t2}, 2, v{t2}")
    A(f"v_add_u32 v{t2}, s{sT0}, v{t2}")
    A(f"v_add_u32 v{t2}, {NEGM}, v{t2}")
    A(f"v_cmp_gt_u32 {s(sLO,2)}, 32, v{vLane}")
    CF = vE + 24
    for t in range(5):
        for i in range(1, 4):
            A(f"v_mov_b32 v{CF+4*t+i}, 0")
    A("s_waitcnt lgkmcnt(0)")
    for lt in range(2):
        for i in range(1, 4):
            A(f"v_mov_b32 v{xf(0,lt)+i}, 0")
    A("s_barrier")
    for t in range(5):
        A(f"ds_read_b32 v{vE+16+t}, v{t3} offset:{128*t}")
    A(f"ds_read_b32 v{xf(0,0)}, v{t2}")
    A(f"ds_read_b32 v{xf(0,1)}, v{t2} offset:128")
    A(f"ds_read_b32 v{vE+4}, v{t2} offset:{RSTD-NEGM}")
    A(f"ds_read_b32 v{vE+5}, v{t2} offset:{RSTD-NEGM+128}")
    A("s_waitcnt lgkmcnt(4)")
    for t in range(5):
        c_ = vE + 8 + t
        A(f"v_add_f32 v{c_}, v{c_}, v{vE+16+t}")
        A(f"v_cvt_pk_bf16_f32 v{vE+16+t}, v{c_}, v{c_}")
        A(f"v_and_b32 v{vE+16+t}, s{sMask}, v{vE+16+t}")
        A(f"v_sub_f32 v{c_}, v{c_}, v{vE+16+t}")
        A(f"v_cvt_pk_bf16_f32 v{c_}, v{vE+16+t}, v{c_}")
        A(f"v_cndmask_b32 v{CF+4*t}, 0, v{c_}, {s(sLO,2)}")
    A("s_waitcnt lgkmcnt(0)")
    for lt in range(2):
        A(f"v_cndmask_b32 v{xf(0,lt)}, 0, v{xf(0,lt)}, {s(sLO,2)}")
    A("s_nop 1")
    order = sorted(range(5), key=lambda t: {"K": 0, "V": 1, "Q": 2, "F": 3}[VAR[var][t][0]])
    for t in order:
        for lt in range(2):
            A_ = v(CF + 4 * t, 4)
            B_ = v(xf(0, lt), 4)
            if swapped(var, t):
                A_, B_ = B_, A_
            D = v(acc(t, lt), 16)
            A(f"v_mfma_f32_32x32x16_bf16 {D}, {A_}, {B_}, {D}")


LOG2E = "0x3fb8aa3b"
EPS6 = "0x358637bd"


def epi_F(A, t, lt, T_s, sc):
    ac = acc(t, lt)
    r2 = vE + 40 + 2 * lt
    for j in range(0, 8, 2):
        A(f"v_max_f32 v{ac+j}, 0, v{ac+j}")
        A(f"v_max_f32 v{ac+j+1}, 0, v{ac+j+1}")
        A(f"v_pk_mul_f32 {v(ac+8+j,2)}, {v(ac+8+j,2)}, {v(r2,2)}")
        A(f"v_pk_mul_f32 {v(ac+j,2)}, {v(ac+j,2)}, {v(ac+8+j,2)}")
        A(f"v_cvt_pk_bf16_f32 v{ac+j//2}, v{ac+j}, v{ac+j+1}")
    A(f"buffer_store_dwordx4 {v(ac,4)}, v{vE+7}, {s(SRD_ACT,4)}, s{T_s} offen{sc}")


def phi_pair(A, x0, rs_a, rs_b, tmp, out):
    ta, tb = tmp, tmp + 2
    A(f"v_pk_mul_f32 {v(ta,2)}, {v(x0,2)}, {v(rs_a,2)}")
    A(f"v_pk_fma_f32 {v(tb,2)}, {v(x0,2)}, {v(rs_b,2)}, {v(vE+38,2)}")
    A(f"v_exp_f32 v{ta}, v{ta} clamp")
    A(f"v_exp_f32 v{ta+1}, v{ta+1} clamp")
    A(f"v_max_f32 v{tb}, v{vE+38}, v{tb}")
    A(f"v_max_f32 v{tb+1}, v{vE+38}, v{tb+1}")
    A(f"v_pk_add_f32 {v(ta,2)}, {v(ta,2)}, {v(tb,2)}")
    A(f"v_cvt_pk_bf16_f32 v{out}, v{ta}, v{ta+1}")


def epilogue(A, var, sc="", kv_hook=None):
    tiles = VAR[var]
    kinds = [k for k, _ in tiles]
    A(f"v_lshlrev_b32 v{vE+7}, 4, v{vLane}")
    A(f"v_mov_b32 v{vE+38}, {EPS6}")
    A(f"v_mov_b32 v{vE+39}, {EPS6}")
    for lt in range(2):
        A(f"v_mul_f32 v{vE+40+2*lt}, v{vE+4+lt}, v{vE+4+lt}")
        A(f"v_mov_b32 v{vE+41+2*lt}, v{vE+40+2*lt}")
    A(f"s_lshl_b32 s{sT0}, s{sR}, 2")
    A(f"s_lshl_b32 s{sT1}, s{sRH}, 1")
    A(f"s_add_u32 s{sT0}, s{sT0}, s{sT1}")
    A(f"s_mul_i32 s{sT0}, s{sT0}, {144*1024}")
    A(f"s_lshl_b32 s{sT1}, s{sTb}, 10")
    A(f"s_add_u32 s{sT1}, s{sT1}, s{sT0}")
    KV = xf(0, 0)
    if "K" in kinds:
        tK, tV = kinds.index("K"), kinds.index("V")
        RS = vE + 8
        PK = vE + 24
        A(f"v_lshrrev_b32 v{vE}, 5, v{vLane}")
        A(f"v_lshlrev_b32 v{vE}, 4, v{vE}")
        A(f"s_lshl_b32 s{sT2}, s{sRH}, 8")
        A(f"v_add_u32 v{vE}, s{sT2}, v{vE}")
        A(f"v_add_u32 v{vE}, {RSTD}, v{vE}")
        for g in range(4):
            A(f"ds_read_b128 {v(RS+4*g,4)}, v{vE} offset:{32*g}")
        A(f"v_and_b32 v{vE+1}, 31, v{vLane}")
        A(f"v_cmp_eq_u32 {s(sL28,2)}, 28, v{vE+1}")
        for i in range(16):
            A(f"v_mov_b32 v{KV+i}, 0")
        A(f"v_mov_b32 v{vE+2}, {LOG2E}")
        A(f"v_mov_b32 v{vE+3}, {LOG2E}")
        A(f"v_mov_b32 v{vE+46}, 0x3f803f80")
        for lt in range(2):
            A("s_waitcnt lgkmcnt(0)")
            k0, v0_ = acc(tK, lt), acc(tV, lt)
            for j in range(0, 16, 2):
                A(f"v_pk_mul_f32 {v(v0_+j,2)}, {v(v0_+j,2)}, {v(RS+j,2)}")
                A(f"v_pk_mul_f32 {v(k0+j,2)}, {v(k0+j,2)}, {v(RS+j,2)}")
                A(f"v_cvt_pk_bf16_f32 v{v0_+j//2}, v{v0_+j}, v{v0_+j+1}")
            if lt == 0:
                A("s_nop 1")
                for g in range(4):
                    A(f"ds_read_b128 {v(RS+4*g,4)}, v{vE} offset:{128+32*g}")
            for j in range(8):
                A(f"v_cndmask_b32 v{v0_+j}, v{v0_+j}, v{vE+46}, {s(sL28,2)}")
            for j in range(0, 16, 2):
                A(f"v_pk_mul_f32 {v(vE+32,2)}, {v(k0+j,2)}, {v(vE+2,2)}")
                A(f"v_pk_add_f32 {v(vE+34,2)}, {v(k0+j,2)}, {v(vE+38,2)}")
                A(f"v_exp_f32 v{vE+32}, v{vE+32} clamp")
                A(f"v_exp_f32 v{vE+33}, v{vE+33} clamp")
                A(f"v_max_f32 v{vE+34}, v{vE+38}, v{vE+34}")
                A(f"v_max_f32 v{vE+35}, v{vE+38}, v{vE+35}")
                A(f"v_pk_add_f32 {v(vE+32,2)}, {v(vE+32,2)}, {v(vE+34,2)}")
                A(f"v_cvt_pk_bf16_f32 v{PK+j//2}, v{vE+32}, v{vE+33}")
            A("s_nop 1")
            for u in range(2):
                A(f"v_mfma_f32_32x32x16_bf16 {v(KV,16)}, {v(PK+4*u,4)}, {v(v0_+4*u,4)}, {v(KV,16)}")
    else:
        A("s_nop 7")
    pending_kv = "K" in kinds

    def kv_store():
        A(f"s_lshl_b32 s{sT3}, s{sHKV}, 5")
        A(f"s_lshl_b32 s{sT2}, s{sR}, 1")
        A(f"s_add_u32 s{sT3}, s{sT3}, s{sT2}")
        A(f"s_add_u32 s{sT3}, s{sT3}, s{sRH}")
        A(f"s_lshl_b32 s{sT3}, s{sT3}, 12")
        for g in range(4):
            A(f"buffer_store_dwordx4 {v(KV+4*g,4)}, v{vE+7}, {s(SRD_KVP,4)}, s{sT3} offen offset:{1024*g}{sc}")
        if kv_hook:
            kv_hook(A)

    for t, (k, i) in enumerate(tiles):
        if k != "F":
            continue
        for lt in range(2):
            A(f"s_add_u32 s{sT2}, s{sT1}, {lt*144*1024 + i*1024}")
            epi_F(A, t, lt, sT2, sc)
            if pending_kv:
                kv_store()
                pending_kv = False
    if "Q" in kinds:
        A(f"v_mov_b32 v{vE}, {LOG2E}")
        for lt in range(2):
            ra, rb = vE + 8 + 4 * lt, vE + 10 + 4 * lt
            A(f"v_mul_f32 v{ra}, v{vE}, v{vE+4+lt}")
            A(f"v_mov_b32 v{ra+1}, v{ra}")
            A(f"v_mov_b32 v{rb}, v{vE+4+lt}")
            A(f"v_mov_b32 v{rb+1}, v{vE+4+lt}")
        A(f"v_cmp_gt_u32 {s(sLO,2)}, 32, v{vLane}")
        A(f"s_lshl_b32 s{sT3}, s{sHQ}, 11")
        A(f"s_add_u32 s{sT3}, s{sT3}, s{sT0}")
        for t, (k, q) in enumerate(tiles):
            if k != "Q":
                continue
            for lt in range(2):
                ra, rb = vE + 8 + 4 * lt, vE + 10 + 4 * lt
                q0 = acc(t, lt)
                for j in range(0, 16, 2):
                    phi_pair(A, q0 + j, ra, rb, vE + 32, q0 + j // 2)
                A(f"v_cndmask_b32 v{q0+6}, 0, v{q0+6}, {s(sLO,2)}")
                A(f"v_cndmask_b32 v{q0+7}, 0, v{q0+7}, {s(sLO,2)}")
                for u in range(2):
                    A(f"s_add_u32 s{sT2}, s{sT3}, {lt*144*1024 + (112+2*q+u)*1024}")
                    A(f"buffer_store_dwordx4 {v(q0+4*u,4)}, v{vE+7}, {s(SRD_ACT,4)}, s{sT2} offen{sc}")
```

```python
from common import *
import p1
from p1 import ACT_OFF, ACT_BYTES, KVP_OFF, KVP_BYTES, KVF_OFF, KVF_BYTES
SLOT = 28800
WPART = 20512

W2X = 148480
RED_STRIDE = 272
RED_W = 64 * RED_STRIDE

sXp, sWOp, sWDp, sOUTp, sWSp = 4, 6, 8, 10, 12
SRD_WD, SRD_WO, SRD_ACT2, SRD_KVF, SRD_X, SRD_OUT = 16, 20, 24, 28, 36, 40
sMT, sNT, sW2, sH, sT0, sT1, sT2, sM0b, sWDoff, sWOoff = 44, 45, 46, 47, 48, 49, 50, 51, 52, 53
sLO = 54
sPQ = 56
vLane = 1
vL16 = 2
vW2off = 3
vWB = 4
vT = 12
vH = 16
NH = 22
vACC = 192
aW2 = 0
aW2b = 144
aKV = 160


def acc(ns, ss):
    return vACC + 16 * (2 * ns + ss)


def w2_lds(j):
    if j == 35:
        return 3, 0
    slot = (9 + j // 7) % 5
    u = j % 7
    rng = slot // 2
    return rng, (slot - 2 * rng) * SLOT + 1024 * u


def w2_lds_abs(j):
    if j == 35:
        return None
    slot = (9 + j // 7) % 5
    return slot * SLOT + 1024 * (j % 7)


def w2_src(kk, part):
    if kk < 28:
        return "wd", (16 * kk + 8 * part) * 896
    a_ = kk - 28
    return "wo", (28 * (a_ >> 1) + 16 * (a_ & 1) + 8 * part) * 896


def w2_dma(A, half):
    for j in range(36):
        kk = 18 * half + j // 2
        kind, off = w2_src(kk, j & 1)
        if j < 35:
            A(f"s_add_u32 m0, s{sM0b}, {w2_lds_abs(j)}")
        else:
            A(f"s_lshl_b32 s{sT0}, s{sW2}, 10")
            A(f"s_add_u32 m0, s{sT0}, {W2X}")
        base, srd_ = (sWDoff, SRD_WD) if kind == "wd" else (sWOoff, SRD_WO)
        A(f"s_add_u32 s{sT1}, s{base}, {off}")
        A(f"buffer_load_dwordx4 v{vW2off}, {s(srd_,4)}, s{sT1} offen lds")


def w2_read(kk, dst, is_agpr=True):
    R = []
    j0 = 2 * (kk % 18)
    for ns in range(2):
        for part in range(2):
            b, imm = w2_lds(j0 + part)
            reg = vWB + 2 * b + ns
            d = dst + 4 * ns + 2 * part
            R.append(f"ds_read_b64_tr_b16 {a(d,2)}, v{reg} offset:{imm}")
    return R


def setup_ids(A, wgreg="s2"):
    A(f"s_and_b32 s{sT0}, {wgreg}, 7")
    A(f"s_lshl_b32 s{sT0}, s{sT0}, 2")
    A(f"s_bfe_u32 s{sT1}, {wgreg}, 0x20003")
    A(f"s_add_u32 s{sMT}, s{sT0}, s{sT1}")
    A(f"s_lshr_b32 s{sNT}, {wgreg}, 5")


def setup(A):
    srd(A, SRD_WD, sWDp, 1792 * 896)
    srd(A, SRD_WO, sWOp, 448 * 896)
    srd(A, SRD_ACT2, sWSp, ACT_BYTES, ACT_OFF)
    srd(A, SRD_KVF, sWSp, KVF_BYTES, KVF_OFF)
    srd(A, SRD_X, sXp, 2048 * 896)
    srd(A, SRD_OUT, sOUTp, 2048 * 896)
    A(f"v_lshlrev_b32 v{vL16}, 4, v{vLane}")
    A(f"v_lshrrev_b32 v{vT}, 3, v{vLane}")
    A(f"v_mul_u32_u24 v{vT+1}, 896, v{vT}")
    A(f"v_bfe_u32 v{vT+2}, v{vLane}, 4, 1")
    A(f"v_lshlrev_b32 v{vT+2}, 2, v{vT+2}")
    A(f"v_and_b32 v{vT+3}, 7, v{vLane}")
    A(f"v_xor_b32 v{vT+3}, v{vT+3}, v{vT+2}")
    A(f"v_lshlrev_b32 v{vT+3}, 4, v{vT+3}")
    A(f"s_lshl_b32 s{sT0}, s{sNT}, 7")
    A(f"v_add3_u32 v{vW2off}, v{vT+1}, v{vT+3}, s{sT0}")
    A(f"s_mul_i32 s{sWDoff}, s{sW2}, {28*16*896}")
    A(f"s_mul_i32 s{sWOoff}, s{sW2}, {4*28*896}")
    A(f"s_mul_i32 s{sM0b}, s{sW2}, 7232")
    A(f"s_and_b32 s{sT0}, s{sW2}, 1")
    A(f"s_mul_i32 s{sT0}, s{sT0}, 32")
    A(f"s_sub_u32 s{sM0b}, s{sM0b}, s{sT0}")
    A(f"s_cmp_eq_u32 s{sW2}, 3")
    A(f"s_cselect_b32 s{sT0}, 32, 0")
    A(f"s_sub_u32 s{sM0b}, s{sM0b}, s{sT0}")
    A(f"v_lshrrev_b32 v{vT}, 5, v{vLane}")
    A(f"v_lshlrev_b32 v{vT}, 2, v{vT}")
    A(f"v_bfe_u32 v{vT+1}, v{vLane}, 2, 2")
    A(f"v_add_u32 v{vT}, v{vT}, v{vT+1}")
    A(f"v_lshlrev_b32 v{vT}, 7, v{vT}")
    A(f"v_bfe_u32 v{vT+1}, v{vLane}, 4, 1")
    A(f"v_lshlrev_b32 v{vT+1}, 1, v{vT+1}")
    A(f"v_bfe_u32 v{vT+2}, v{vLane}, 1, 1")
    A(f"v_add_u32 v{vT+1}, v{vT+1}, v{vT+2}")
    A(f"v_bfe_u32 v{vT+2}, v{vLane}, 3, 1")
    A(f"v_lshlrev_b32 v{vT+2}, 2, v{vT+2}")
    A(f"v_xor_b32 v{vT+1}, v{vT+1}, v{vT+2}")
    A(f"v_lshl_add_u32 v{vT}, v{vT+1}, 4, v{vT}")
    A(f"v_and_b32 v{vT+1}, 1, v{vLane}")
    A(f"v_lshl_add_u32 v{vT}, v{vT+1}, 3, v{vT}")
    A(f"v_xor_b32 v{vT+1}, 64, v{vT}")
    for rng in range(3):
        for ns in range(2):
            A(f"v_add_u32 v{vWB+2*rng+ns}, s{sM0b}, v{vT+ns}")
            if rng:
                A(f"v_add_u32 v{vWB+2*rng+ns}, {2*rng*SLOT}, v{vWB+2*rng+ns}")
    A(f"s_lshl_b32 s{sT0}, s{sW2}, 10")
    A(f"s_add_u32 s{sT0}, s{sT0}, {W2X}")
    for ns in range(2):
        A(f"v_add_u32 v{vWB+6+ns}, s{sT0}, v{vT+ns}")
    A(f"s_mul_i32 s{sH}, s{sMT}, {2*144*1024}")
    A(f"s_mul_i32 s{sT0}, s{sW2}, {8*1024}")
    A(f"s_add_u32 s{sPQ}, s{sH}, s{sT0}")
    A(f"s_add_u32 s{sPQ}, s{sPQ}, {112*1024}")
    A(f"s_mul_i32 s{sT0}, s{sW2}, {28*1024}")
    A(f"s_add_u32 s{sH}, s{sH}, s{sT0}")
    A(f"v_cmp_gt_u32 {s(sLO,2)}, 32, v{vLane}")
    for i in range(64):
        A(f"v_mov_b32 v{vACC+i}, 0")


def hslot(i):
    return vH + 8 * (i % NH)


def h_load(kk, sc):
    L = []
    for ss in range(2):
        if kk < 28:
            base, off = sH, ss * 144 * 1024 + kk * 1024
        else:
            base, off = sPQ, ss * 144 * 1024 + (kk - 28) * 1024
        L.append(f"s_add_u32 s{sT2}, s{base}, {off}\nbuffer_load_dwordx4 {v(hslot(kk)+4*ss,4)}, v{vL16}, {s(SRD_ACT2,4)}, s{sT2} offen{sc}")
    return L


def kv_loads(sc):
    L = []
    for a_ in range(4):
        for u in range(2):
            L.append(f"s_mul_i32 s{sT2}, s{sW2}, {8*1024}\ns_add_u32 s{sT2}, s{sT2}, {(2*a_+u)*1024}\n"
                     f"buffer_load_dwordx4 {a(aKV+8*a_+4*u,4)}, v{vL16}, {s(SRD_KVF,4)}, s{sT2} offen{sc}")
    return L


def main_body(A, sc, pre_outstanding=0, stamp=None):
    issued = []
    def issue(lst, tag):
        for l in lst:
            A(l)
            issued.append(tag)
    def wait_for(tag):
        last = max(i for i, t in enumerate(issued) if t == tag)
        n = len(issued) - 1 - last
        A(f"s_waitcnt vmcnt({min(n,63)})")
    for kk in range(NH):
        issue(h_load(kk, sc), ("h", kk))
    nxt = NH
    kv_done = False
    for kk in range(28):
        wait_for(("h", kk))
        if kk == 17:
            A.ext(w2_read(18, aW2b))
        if kk >= 18:
            A("s_waitcnt lgkmcnt(0)")
        M = []
        for ns in range(2):
            for ss in range(2):
                wreg = a(aW2 + 8 * kk + 4 * ns, 4) if kk < 18 else a(aW2b + 8 * (kk & 1) + 4 * ns, 4)
                M.append(f"v_mfma_f32_32x32x16_bf16 {v(acc(ns,ss),16)}, {wreg}, {v(hslot(kk)+4*ss,4)}, {v(acc(ns,ss),16)}")
        F = []
        if kk >= 18:
            F += w2_read(kk + 1, aW2b + 8 * ((kk + 1) & 1))
        A.ext(interleave(M, F, [2, 2, 0, 0]))
        if nxt < 36:
            issue(h_load(nxt, sc), ("h", nxt))
            nxt += 1
        if kk == 12 and not kv_done:
            yield_kv = True
    return issued, nxt


def attention_and_finish(A, sc, issued, nxt, kvwait, stamp=None):
    def issue(lst, tag):
        for l in lst:
            A(l)
            issued.append(tag)
    def wait_for(tag):
        last = max(i for i, t in enumerate(issued) if t == tag)
        n = len(issued) - 1 - last
        A(f"s_waitcnt vmcnt({min(n,63)})")
    while nxt < 36:
        issue(h_load(nxt, sc), ("h", nxt))
        nxt += 1
    if kvwait:
        kvwait(A)
    issue(kv_loads(sc), "kv")
    XR = 12 + 0
    A(f"v_lshrrev_b32 v{vT}, 2, v0")
    A(f"v_mul_u32_u24 v{vT}, 896, v{vT}")
    A(f"v_and_b32 v{vT+1}, 3, v0")
    A(f"v_lshlrev_b32 v{vT+1}, 5, v{vT+1}")
    A(f"s_mul_i32 s{sT0}, s{sMT}, {64*896}")
    A(f"s_lshl_b32 s{sT1}, s{sNT}, 7")
    A(f"s_add_u32 s{sT0}, s{sT0}, s{sT1}")
    A(f"v_add3_u32 v{vW2off}, v{vT}, v{vT+1}, s{sT0}")
    wait_for("kv")
    NUM = [hslot(14), hslot(16)]
    OF = hslot(18)
    XRES = hslot(20)
    issue([f"buffer_load_dwordx4 {v(XRES,4)}, v{vW2off}, {s(SRD_X,4)}, 0 offen",
           f"buffer_load_dwordx4 {v(XRES+4,4)}, v{vW2off}, {s(SRD_X,4)}, 0 offen offset:16"], "x")
    for a_ in range(4):
        kk0 = 28 + 2 * a_
        wait_for(("h", kk0 + 1))
        for ss in range(2):
            A(f"v_mfma_f32_32x32x16_bf16 {v(NUM[ss],16)}, {a(aKV+8*a_,4)}, {v(hslot(kk0)+4*ss,4)}, 0")
        for ss in range(2):
            A(f"v_mfma_f32_32x32x16_bf16 {v(NUM[ss],16)}, {a(aKV+8*a_+4,4)}, {v(hslot(kk0+1)+4*ss,4)}, {v(NUM[ss],16)}")
        A("s_nop 7")
        A("s_nop 3")
        for ss in range(2):
            n = NUM[ss]
            A(f"v_mov_b32 v{vT}, v{n+12}")
            A(f"v_mov_b32 v{vT+1}, v{n+12}")
            A("s_nop 1")
            A(f"v_permlane32_swap_b32 v{vT}, v{vT+1}")
            A("s_nop 1")
            A(f"v_add_f32 v{vT+2}, {p1.EPS6}, v{vT+1}")
            A(f"v_rcp_f32 v{vT+2}, v{vT+2}")
            A("s_nop 0")
            A(f"v_mov_b32 v{vT+3}, v{vT+2}")
            for j in range(0, 16, 2):
                A(f"v_pk_mul_f32 {v(n+j,2)}, {v(n+j,2)}, {v(vT+2,2)}")
                A(f"v_cvt_pk_bf16_f32 v{OF+8*ss+j//2}, v{n+j}, v{n+j+1}")
            A(f"v_cndmask_b32 v{OF+8*ss+6}, 0, v{OF+8*ss+6}, {s(sLO,2)}")
            A(f"v_cndmask_b32 v{OF+8*ss+7}, 0, v{OF+8*ss+7}, {s(sLO,2)}")
        for u in range(2):
            kk = kk0 + u
            A("s_waitcnt lgkmcnt(0)")
            M = []
            for ns in range(2):
                for ss in range(2):
                    M.append(f"v_mfma_f32_32x32x16_bf16 {v(acc(ns,ss),16)}, {a(aW2b+8*(kk&1)+4*ns,4)}, {v(OF+8*ss+4*u,4)}, {v(acc(ns,ss),16)}")
            F = w2_read(kk + 1, aW2b + 8 * ((kk + 1) & 1)) if kk + 1 < 36 else []
            A.ext(interleave(M, F, [2, 2, 0, 0]))
    if stamp:
        stamp(A, 3)
    A("s_barrier")
    A(f"v_and_b32 v{vT}, 31, v{vLane}")
    A(f"v_mul_u32_u24 v{vT}, {RED_STRIDE}, v{vT}")
    A(f"v_lshrrev_b32 v{vT+1}, 5, v{vLane}")
    A(f"v_lshlrev_b32 v{vT+1}, 4, v{vT+1}")
    A(f"s_mul_i32 s{sT0}, s{sW2}, {RED_W}")
    A(f"v_add3_u32 v{vT}, v{vT}, v{vT+1}, s{sT0}")
    A("s_nop 7")
    for ns in range(2):
        for ss in range(2):
            for g in range(4):
                A(f"ds_write_b128 v{vT}, {v(acc(ns,ss)+4*g,4)} offset:{ss*32*RED_STRIDE + ns*128 + g*32}")
    A(f"v_lshrrev_b32 v{vT+1}, 2, v0")
    A(f"v_mul_u32_u24 v{vT+1}, {RED_STRIDE}, v{vT+1}")
    A(f"v_and_b32 v{vT+2}, 3, v0")
    A(f"v_lshl_add_u32 v{vT+1}, v{vT+2}, 6, v{vT+1}")
    A("s_waitcnt lgkmcnt(0)")
    A("s_barrier")
    R = vH
    for w in range(4):
        for q in range(4):
            off = w * RED_W + 16 * q
            A(f"ds_read_b128 {v(R+16*w+4*q,4)}, v{vT+1} offset:{off}")
    A("s_waitcnt lgkmcnt(0)")
    for i in range(0, 16, 2):
        A(f"v_pk_add_f32 {v(R+i,2)}, {v(R+i,2)}, {v(R+16+i,2)}")
        A(f"v_pk_add_f32 {v(R+32+i,2)}, {v(R+32+i,2)}, {v(R+48+i,2)}")
    for i in range(0, 16, 2):
        A(f"v_pk_add_f32 {v(R+i,2)}, {v(R+i,2)}, {v(R+32+i,2)}")
    wait_for("x")
    for i in range(8):
        A(f"v_lshlrev_b32 v{R+32}, 16, v{XRES+i}")
        A(f"v_and_b32 v{R+33}, 0xffff0000, v{XRES+i}")
        A(f"v_pk_add_f32 {v(R+2*i,2)}, {v(R+2*i,2)}, {v(R+32,2)}")
        A(f"v_cvt_pk_bf16_f32 v{R+16+i}, v{R+2*i}, v{R+2*i+1}")
    A(f"buffer_store_dwordx4 {v(R+16,4)}, v{vW2off}, {s(SRD_OUT,4)}, 0 offen")
    A(f"buffer_store_dwordx4 {v(R+20,4)}, v{vW2off}, {s(SRD_OUT,4)}, 0 offen offset:16")


def kv_reduce(A, hreg, sws, sc, srd_p=16, srd_f=20):
    srd(A, srd_p, sws, KVP_BYTES, KVP_OFF)
    srd(A, srd_f, sws, KVF_BYTES, KVF_OFF)
    A("v_lshlrev_b32 v2, 4, v0")
    A(f"s_lshl_b32 s48, s{hreg}, 17")
    for p in range(32):
        A(f"s_add_u32 s49, s48, {p*4096}")
        A(f"buffer_load_dwordx4 {v(16+4*p,4)}, v2, {s(srd_p,4)}, s49 offen{sc}")
    for p in range(1, 32):
        A(f"s_waitcnt vmcnt({31-p})")
        A(f"v_pk_add_f32 v[16:17], v[16:17], {v(16+4*p,2)}")
        A(f"v_pk_add_f32 v[18:19], v[18:19], {v(18+4*p,2)}")
    A("v_cvt_pk_bf16_f32 v4, v16, v17")
    A("v_cvt_pk_bf16_f32 v5, v18, v19")
    A("v_cmp_gt_u32 vcc, 224, v0")
    A("s_nop 1")
    A("v_cndmask_b32 v4, 0, v4, vcc")
    A("v_cndmask_b32 v5, 0, v5, vcc")
    A("v_lshrrev_b32 v6, 7, v0")
    A("v_lshlrev_b32 v6, 10, v6")
    A("v_and_b32 v7, 63, v0")
    A("v_lshl_add_u32 v6, v7, 4, v6")
    A("v_bfe_u32 v7, v0, 6, 1")
    A("v_lshl_add_u32 v6, v7, 3, v6")
    A(f"s_lshl_b32 s48, s{hreg}, 11")
    A(f"buffer_store_dwordx2 v[4:5], v6, {s(srd_f,4)}, s48 offen{sc}")
```

```python
from common import *
import p1
from p1 import (ACT_OFF, ACT_BYTES, KVP_OFF, KVP_BYTES, KVF_OFF, KVF_BYTES, WSLOT, XBASE, SPARE, FLG_OFF, FLG_BYTES,
                FLGF, EPOCH, SRD_WD, sMT, sNT, sTag, sWOp, sOUTp, vW2pat, sW)

RED_STRIDE = 272
RED_W = 64 * RED_STRIDE

sXp, sWSp = 4, 12
SRD_FLG, SRD_WO, SRD_X, SRD_ACT2, SRD_KVF, SRD_OUT = 16, 20, 24, 28, 32, 40
sW2 = sW
sH, sT0, sT1, sT2, sWDoff, sWOoff = 47, 48, 49, 50, 61, 62
sLO = 54
sPQ, sM5, sM2, sM7, sSpin = 56, 57, 58, 59, 60
vLane = 1
vL16 = 2
vW2off = 3
vWB = 4
vT = 12
vH = 16
NH = 22
vACC = 192
aW2 = 64
aW2b = 208
aKV = 224
SPIN_MAX = 200000

OPT = {"pre2": 18}


def acc(ns, ss):
    return vACC + 16 * (2 * ns + ss)


def w2_map(j):
    if j < 21:
        t, u = divmod(j, 7)
        if u < 5:
            slot = [2, 3, 0][t]
            return (1, 1024 * u) if slot == 3 else (0, slot * WSLOT + 1024 * u)
        return 2, (3 + t) * 8192 + 1024 * (u - 5)
    if j < 28:
        return 3, 1024 * (j - 21)
    if j < 33:
        return 0, WSLOT + 1024 * (j - 28)
    if j < 35:
        return 2, 1024 * (j - 33)
    return 2, 8192


CLS_BASE = [0, 3 * WSLOT, XBASE, SPARE]
CLS_SREG = [sM5, sM5, sM2, sM7]


def w2_src(kk, part):
    if kk < 28:
        return "wd", (16 * kk + 8 * part) * 896
    a_ = kk - 28
    return "wo", (28 * (a_ >> 1) + 16 * (a_ & 1) + 8 * part) * 896


def w2_dma_unit(half, j, vreg=vW2off, tmp=sT1):
    kk = 18 * half + j // 2
    kind, off = w2_src(kk, j & 1)
    cls, o = w2_map(j)
    base, srd_ = (sWDoff, SRD_WD) if kind == "wd" else (sWOoff, SRD_WO)
    m = f"s_add_u32 m0, s{CLS_SREG[cls]}, {CLS_BASE[cls] + o}\ns_add_u32 s{tmp}, s{base}, {off}"
    l = f"buffer_load_dwordx4 v{vreg}, {s(srd_,4)}, s{tmp} offen lds"
    return m + "\n" + l


def wave_consts(A):
    A(f"s_mul_i32 s{sM5}, s{sW2}, 5120")
    A(f"s_lshl_b32 s{sM2}, s{sW2}, 11")
    A(f"s_mul_i32 s{sM7}, s{sW2}, 7168")
    A(f"s_mul_i32 s{sWDoff}, s{sW2}, {28*16*896}")
    A(f"s_mul_i32 s{sWOoff}, s{sW2}, {4*28*896}")


def w2_read(kk, dst):
    R = []
    j0 = 2 * (kk % 18)
    for ns in range(2):
        for part in range(2):
            cls, imm = w2_map(j0 + part)
            reg = vWB + 2 * cls + ns
            d = dst + 4 * ns + 2 * part
            R.append(f"ds_read_b64_tr_b16 {a(d,2)}, v{reg} offset:{imm}")
    return R


def setup(A):
    srd(A, SRD_WO, sWOp, 448 * 896)
    srd(A, SRD_KVF, sWSp, KVF_BYTES, KVF_OFF)
    srd(A, SRD_X, sXp, 2048 * 896)
    srd(A, SRD_OUT, sOUTp, 2048 * 896)
    A(f"v_lshlrev_b32 v{vL16}, 4, v{vLane}")
    A(f"v_mov_b32 v{vW2off}, v{vW2pat}")
    A(f"v_lshrrev_b32 v{vT}, 5, v{vLane}")
    A(f"v_lshlrev_b32 v{vT}, 2, v{vT}")
    A(f"v_bfe_u32 v{vT+1}, v{vLane}, 2, 2")
    A(f"v_add_u32 v{vT}, v{vT}, v{vT+1}")
    A(f"v_lshlrev_b32 v{vT}, 7, v{vT}")
    A(f"v_bfe_u32 v{vT+1}, v{vLane}, 4, 1")
    A(f"v_lshlrev_b32 v{vT+1}, 1, v{vT+1}")
    A(f"v_bfe_u32 v{vT+2}, v{vLane}, 1, 1")
    A(f"v_add_u32 v{vT+1}, v{vT+1}, v{vT+2}")
    A(f"v_bfe_u32 v{vT+2}, v{vLane}, 3, 1")
    A(f"v_lshlrev_b32 v{vT+2}, 2, v{vT+2}")
    A(f"v_xor_b32 v{vT+1}, v{vT+1}, v{vT+2}")
    A(f"v_lshl_add_u32 v{vT}, v{vT+1}, 4, v{vT}")
    A(f"v_and_b32 v{vT+1}, 1, v{vLane}")
    A(f"v_lshl_add_u32 v{vT}, v{vT+1}, 3, v{vT}")
    A(f"v_xor_b32 v{vT+1}, 64, v{vT}")
    for cls in range(4):
        A(f"s_add_u32 s{sT0}, s{CLS_SREG[cls]}, {CLS_BASE[cls]}")
        for ns in range(2):
            A(f"v_add_u32 v{vWB+2*cls+ns}, s{sT0}, v{vT+ns}")
    A(f"s_mul_i32 s{sH}, s{sMT}, {2*144*1024}")
    A(f"s_mul_i32 s{sT0}, s{sW2}, {8*1024}")
    A(f"s_add_u32 s{sPQ}, s{sH}, s{sT0}")
    A(f"s_add_u32 s{sPQ}, s{sPQ}, {112*1024}")
    A(f"s_mul_i32 s{sT0}, s{sW2}, {28*1024}")
    A(f"s_add_u32 s{sH}, s{sH}, s{sT0}")
    A(f"v_cmp_gt_u32 {s(sLO,2)}, 32, v{vLane}")


def poll(A, vaddr, vtmp, name):
    lab, done = A.new_label("poll" + name), A.new_label("pdone" + name)
    A(f"s_mov_b32 s{sSpin}, 0")
    A.label(lab)
    A(f"buffer_load_dword v{vtmp}, v{vaddr}, {s(SRD_FLG,4)}, 0 offen sc1")
    A(f"s_add_u32 s{sSpin}, s{sSpin}, 1")
    A("s_waitcnt vmcnt(0)")
    A(f"v_cmp_ne_u32 vcc, s{sTag}, v{vtmp}")
    A(f"s_cbranch_vccz {done}")
    A(f"s_cmp_lt_u32 s{sSpin}, {SPIN_MAX}")
    A(f"s_cbranch_scc1 {lab}")
    A.label(done)


def hslot(i):
    return vH + 8 * (i % NH)


def h_load(kk, sc):
    L = []
    for ss in range(2):
        if kk < 28:
            base, off = sH, ss * 144 * 1024 + kk * 1024
        else:
            base, off = sPQ, ss * 144 * 1024 + (kk - 28) * 1024
        L.append(f"s_add_u32 s{sT2}, s{base}, {off}\nbuffer_load_dwordx4 {v(hslot(kk)+4*ss,4)}, v{vL16}, {s(SRD_ACT2,4)}, s{sT2} offen{sc}")
    return L


def kv_loads(sc):
    L = []
    for a_ in range(4):
        for u in range(2):
            L.append(f"s_mul_i32 s{sT2}, s{sW2}, {8*1024}\ns_add_u32 s{sT2}, s{sT2}, {(2*a_+u)*1024}\n"
                     f"buffer_load_dwordx4 {a(aKV+8*a_+4*u,4)}, v{vL16}, {s(SRD_KVF,4)}, s{sT2} offen{sc}")
    return L


class VM:
    def __init__(self, A):
        self.A, self.issued = A, []
    def issue(self, lst, tag):
        for l in lst:
            self.A(l)
            self.issued.append(tag)
    def wait(self, tag):
        last = max(i for i, t in enumerate(self.issued) if t == tag)
        n = len(self.issued) - 1 - last
        self.A(f"s_waitcnt vmcnt({min(n,63)})")


def phase2(A, sc, stamp, exit_label):
    setup(A)
    for kk in range(18):
        A.ext(w2_read(kk, aW2 + 8 * kk))
    for i in range(64):
        A(f"v_mov_b32 v{vACC+i}, 0")
    A(f"v_and_b32 v{vT}, 31, v{vLane}")
    A(f"v_lshlrev_b32 v{vT}, 2, v{vT}")
    A(f"s_lshl_b32 s{sT0}, s{sMT}, 7")
    A(f"v_add_u32 v{vT}, s{sT0}, v{vT}")
    A("s_waitcnt lgkmcnt(0)")
    stamp(A, 6)
    npre = OPT["pre2"]
    for j in range(npre):
        A(w2_dma_unit(1, j))
    poll(A, vT, vT + 1, "A")
    stamp(A, 7)
    vm = VM(A)
    for kk in range(NH):
        vm.issue(h_load(kk, sc), ("h", kk))
    nxt = NH
    nw2 = npre
    for kk in range(28):
        vm.wait(("h", kk))
        if kk == 17:
            if nw2 > npre:
                vm.wait(("w2", 1)) if npre <= 1 else None
            A.ext(w2_read(18, aW2b))
        if kk >= 18:
            A("s_waitcnt lgkmcnt(0)")
        M = []
        for ns in range(2):
            for ss in range(2):
                wreg = a(aW2 + 8 * kk + 4 * ns, 4) if kk < 18 else a(aW2b + 8 * (kk & 1) + 4 * ns, 4)
                M.append(f"v_mfma_f32_32x32x16_bf16 {v(acc(ns,ss),16)}, {wreg}, {v(hslot(kk)+4*ss,4)}, {v(acc(ns,ss),16)}")
        F = []
        if kk >= 18:
            jn = 2 * ((kk + 1) - 18) + 1
            if jn >= npre:
                vm.wait(("w2", jn))
            F += w2_read(kk + 1, aW2b + 8 * ((kk + 1) & 1))
        A.ext(interleave(M, F, [2, 2, 0, 0]))
        for _ in range(2):
            if nw2 < 36:
                vm.issue([w2_dma_unit(1, nw2)], ("w2", nw2))
                nw2 += 1
        if nxt < 36:
            vm.issue(h_load(nxt, sc), ("h", nxt))
            nxt += 1
    stamp(A, 8)
    assert nw2 == 36
    while nxt < 36:
        vm.issue(h_load(nxt, sc), ("h", nxt))
        nxt += 1
    A(f"v_and_b32 v{vT}, 7, v{vLane}")
    A(f"v_lshlrev_b32 v{vT}, 2, v{vT}")
    A(f"s_lshl_b32 s{sT0}, s{sW2}, 5")
    A(f"s_add_u32 s{sT0}, s{sT0}, {FLGF}")
    A(f"v_add_u32 v{vT}, s{sT0}, v{vT}")
    poll(A, vT, vT + 1, "F")
    vm.issued = []
    stamp(A, 9)
    vm.issue(kv_loads(sc), "kv")
    XR = 12 + 0
    A(f"v_lshrrev_b32 v{vT}, 2, v0")
    A(f"v_mul_u32_u24 v{vT}, 896, v{vT}")
    A(f"v_and_b32 v{vT+1}, 3, v0")
    A(f"v_lshlrev_b32 v{vT+1}, 5, v{vT+1}")
    A(f"s_mul_i32 s{sT0}, s{sMT}, {64*896}")
    A(f"s_lshl_b32 s{sT1}, s{sNT}, 7")
    A(f"s_add_u32 s{sT0}, s{sT0}, s{sT1}")
    A(f"v_add3_u32 v{vW2off}, v{vT}, v{vT+1}, s{sT0}")
    NUM = [hslot(14 + 0), hslot(16)]
    OF = hslot(18)
    XRES = hslot(20)
    vm.issue([f"buffer_load_dwordx4 {v(XRES,4)}, v{vW2off}, {s(SRD_X,4)}, 0 offen",
              f"buffer_load_dwordx4 {v(XRES+4,4)}, v{vW2off}, {s(SRD_X,4)}, 0 offen offset:16"], "x")
    vm.wait("kv")
    for a_ in range(4):
        kk0 = 28 + 2 * a_
        for ss in range(2):
            A(f"v_mfma_f32_32x32x16_bf16 {v(NUM[ss],16)}, {a(aKV+8*a_,4)}, {v(hslot(kk0)+4*ss,4)}, 0")
        for ss in range(2):
            A(f"v_mfma_f32_32x32x16_bf16 {v(NUM[ss],16)}, {a(aKV+8*a_+4,4)}, {v(hslot(kk0+1)+4*ss,4)}, {v(NUM[ss],16)}")
        A("s_nop 7")
        A("s_nop 3")
        for ss in range(2):
            n = NUM[ss]
            A(f"v_mov_b32 v{vT}, v{n+12}")
            A(f"v_mov_b32 v{vT+1}, v{n+12}")
            A("s_nop 1")
            A(f"v_permlane32_swap_b32 v{vT}, v{vT+1}")
            A("s_nop 1")
            A(f"v_add_f32 v{vT+2}, {p1.EPS6}, v{vT+1}")
            A(f"v_rcp_f32 v{vT+2}, v{vT+2}")
            A("s_nop 0")
            A(f"v_mov_b32 v{vT+3}, v{vT+2}")
            for j in range(0, 16, 2):
                A(f"v_pk_mul_f32 {v(n+j,2)}, {v(n+j,2)}, {v(vT+2,2)}")
                A(f"v_cvt_pk_bf16_f32 v{OF+8*ss+j//2}, v{n+j}, v{n+j+1}")
            A(f"v_cndmask_b32 v{OF+8*ss+6}, 0, v{OF+8*ss+6}, {s(sLO,2)}")
            A(f"v_cndmask_b32 v{OF+8*ss+7}, 0, v{OF+8*ss+7}, {s(sLO,2)}")
        for u in range(2):
            kk = kk0 + u
            A("s_waitcnt lgkmcnt(0)")
            M = []
            for ns in range(2):
                for ss in range(2):
                    M.append(f"v_mfma_f32_32x32x16_bf16 {v(acc(ns,ss),16)}, {a(aW2b+8*(kk&1)+4*ns,4)}, {v(OF+8*ss+4*u,4)}, {v(acc(ns,ss),16)}")
            F = w2_read(kk + 1, aW2b + 8 * ((kk + 1) & 1)) if kk + 1 < 36 else []
            A.ext(interleave(M, F, [2, 2, 0, 0]))
    stamp(A, 10)
    A("s_barrier")
    A(f"v_and_b32 v{vT}, 31, v{vLane}")
    A(f"v_mul_u32_u24 v{vT}, {RED_STRIDE}, v{vT}")
    A(f"v_lshrrev_b32 v{vT+1}, 5, v{vLane}")
    A(f"v_lshlrev_b32 v{vT+1}, 4, v{vT+1}")
    A(f"s_mul_i32 s{sT0}, s{sW2}, {RED_W}")
    A(f"v_add3_u32 v{vT}, v{vT}, v{vT+1}, s{sT0}")
    A("s_nop 7")
    for ns in range(2):
        for ss in range(2):
            for g in range(4):
                A(f"ds_write_b128 v{vT}, {v(acc(ns,ss)+4*g,4)} offset:{ss*32*RED_STRIDE + ns*128 + g*32}")
    A(f"v_lshrrev_b32 v{vT+1}, 2, v0")
    A(f"v_mul_u32_u24 v{vT+1}, {RED_STRIDE}, v{vT+1}")
    A(f"v_and_b32 v{vT+2}, 3, v0")
    A(f"v_lshl_add_u32 v{vT+1}, v{vT+2}, 6, v{vT+1}")
    A("s_waitcnt lgkmcnt(0)")
    A("s_barrier")
    R = vH
    for w in range(4):
        for q in range(4):
            off = w * RED_W + 16 * q
            A(f"ds_read_b128 {v(R+16*w+4*q,4)}, v{vT+1} offset:{off}")
    A("s_waitcnt lgkmcnt(0)")
    for i in range(0, 16, 2):
        A(f"v_pk_add_f32 {v(R+i,2)}, {v(R+i,2)}, {v(R+16+i,2)}")
        A(f"v_pk_add_f32 {v(R+32+i,2)}, {v(R+32+i,2)}, {v(R+48+i,2)}")
    for i in range(0, 16, 2):
        A(f"v_pk_add_f32 {v(R+i,2)}, {v(R+i,2)}, {v(R+32+i,2)}")
    vm.wait("x")
    for i in range(8):
        A(f"v_lshlrev_b32 v{R+32}, 16, v{XRES+i}")
        A(f"v_and_b32 v{R+33}, 0xffff0000, v{XRES+i}")
        A(f"v_pk_add_f32 {v(R+2*i,2)}, {v(R+2*i,2)}, {v(R+32,2)}")
        A(f"v_cvt_pk_bf16_f32 v{R+16+i}, v{R+2*i}, v{R+2*i+1}")
    A(f"buffer_store_dwordx4 {v(R+16,4)}, v{vW2off}, {s(SRD_OUT,4)}, 0 offen")
    A(f"buffer_store_dwordx4 {v(R+20,4)}, v{vW2off}, {s(SRD_OUT,4)}, 0 offen offset:16")
    skip = A.new_label("noepoch")
    A(f"s_or_b32 s{sT0}, s2, s{sW2}")
    A(f"s_cmp_lg_u32 s{sT0}, 0")
    A(f"s_cbranch_scc1 {skip}")
    A(f"v_mov_b32 v{vT}, {EPOCH}")
    A(f"v_mov_b32 v{vT+1}, s{sTag}")
    A(f"buffer_store_dword v{vT+1}, v{vT}, {s(SRD_FLG,4)}, 0 offen sc1")
    A.label(skip)


def reducer(A, sc, stamp):
    sHh, sU_, sCh = 47, 52, 53
    SRD_P = 20
    A("s_barrier")
    srd(A, SRD_P, sWSp, KVP_BYTES, KVP_OFF)
    srd(A, SRD_KVF, sWSp, KVF_BYTES, KVF_OFF)
    A(f"s_lshr_b32 s{sHh}, s{sMT}, 1")
    A(f"s_and_b32 s{sU_}, s{sMT}, 1")
    A(f"s_add_u32 s{sT0}, s{sHh}, 7")
    A(f"s_add_u32 s{sT1}, s{sHh}, 16")
    A(f"s_bitcmp1_b32 s{sHh}, 0")
    A(f"s_cselect_b32 s{sT0}, s{sT0}, s{sT1}")
    A(f"s_lshr_b32 s{sT0}, s{sT0}, 1")
    A(f"s_cmp_lt_u32 s{sHh}, 8")
    A(f"s_cselect_b32 s{sCh}, s{sHh}, s{sT0}")
    A(f"v_and_b32 v2, 31, v{vLane}")
    A(f"v_lshlrev_b32 v2, 7, v2")
    A(f"s_lshl_b32 s{sT0}, s{sCh}, 3")
    A(f"s_add_u32 s{sT0}, s{sT0}, 4")
    A(f"v_add_u32 v2, s{sT0}, v2")
    A(f"v_lshlrev_b32 v4, 4, v{vLane}")
    A(f"s_lshl_b32 s{sT0}, s{sHh}, 17")
    A(f"s_lshr_b32 s{sT1}, s{sW2}, 1")
    A(f"s_lshl_b32 s{sT1}, s{sT1}, 16")
    A(f"s_add_u32 s{sT0}, s{sT0}, s{sT1}")
    A(f"s_and_b32 s{sT1}, s{sW2}, 1")
    A(f"s_lshl_b32 s{sT2}, s{sU_}, 1")
    A(f"s_add_u32 s{sT1}, s{sT1}, s{sT2}")
    A(f"s_lshl_b32 s{sT1}, s{sT1}, 10")
    A(f"s_add_u32 s{sT0}, s{sT0}, s{sT1}")
    poll(A, 2, 3, "R")
    stamp(A, 7)
    for p in range(16):
        A(f"s_add_u32 s{sT1}, s{sT0}, {p*4096}")
        A(f"buffer_load_dwordx4 {v(16+4*p,4)}, v4, {s(SRD_P,4)}, s{sT1} offen{sc}")
    for p in range(1, 16):
        A(f"s_waitcnt vmcnt({15-p})")
        A(f"v_pk_add_f32 v[16:17], v[16:17], {v(16+4*p,2)}")
        A(f"v_pk_add_f32 v[18:19], v[18:19], {v(18+4*p,2)}")
    A(f"s_lshl_b32 s{sT1}, s{sW2}, 10")
    A(f"v_add_u32 v5, s{sT1}, v4")
    A("ds_write_b128 v5, v[16:19]")
    A("s_waitcnt lgkmcnt(0)")
    A("s_barrier")
    done = A.new_label("reddone")
    A(f"s_cmp_lg_u32 s{sW2}, 0")
    A(f"s_cbranch_scc1 {done}")
    A("ds_read_b128 v[20:23], v4 offset:2048")
    A("ds_read_b128 v[24:27], v4 offset:1024")
    A("ds_read_b128 v[28:31], v4 offset:3072")
    A("s_waitcnt lgkmcnt(0)")
    A("v_pk_add_f32 v[16:17], v[16:17], v[20:21]")
    A("v_pk_add_f32 v[18:19], v[18:19], v[22:23]")
    A("v_pk_add_f32 v[24:25], v[24:25], v[28:29]")
    A("v_pk_add_f32 v[26:27], v[26:27], v[30:31]")
    A("v_cvt_pk_bf16_f32 v8, v16, v17")
    A("v_cvt_pk_bf16_f32 v9, v18, v19")
    A("v_cvt_pk_bf16_f32 v10, v24, v25")
    A("v_cvt_pk_bf16_f32 v11, v26, v27")
    A(f"s_cmp_eq_u32 s{sU_}, 1")
    A(f"s_cselect_b32 s{sT1}, 32, 64")
    A(f"v_cmp_gt_u32 vcc, s{sT1}, v{vLane}")
    A("s_nop 1")
    A("v_cndmask_b32 v10, 0, v10, vcc")
    A("v_cndmask_b32 v11, 0, v11, vcc")
    A(f"s_lshl_b32 s{sT1}, s{sMT}, 10")
    A(f"buffer_store_dwordx4 v[8:11], v4, {s(SRD_KVF,4)}, s{sT1} offen{sc}")
    A(f"s_lshl_b32 s{sT1}, s{sMT}, 2")
    A(f"s_add_u32 s{sT1}, s{sT1}, {FLGF}")
    A(f"v_mov_b32 v2, s{sT1}")
    A(f"v_mov_b32 v3, s{sTag}")
    A("s_waitcnt vmcnt(0)")
    A(f"buffer_store_dword v3, v2, {s(SRD_FLG,4)}, 0 offen sc1")
    A.label(done)
```

```python
import sys, argparse
sys.path.insert(0, "gen")
from common import *
import p1, p2, p2f

PROF_OFF = 0x4000000
class Stamp:
    def __init__(self, enable):
        self.enable = enable
    def __call__(self, A, idx):
        if not self.enable:
            return
        A("s_memtime s[96:97]")
        A("s_waitcnt lgkmcnt(0)")
        A(f"s_mov_b32 s{84+idx}, s96")
    def real(self, A, idx):
        if not self.enable:
            return
        A("s_memrealtime s[96:97]")
        A("s_waitcnt lgkmcnt(0)")
        A(f"s_mov_b32 s{84+idx}, s96")
    def flush(self, A, n, sws, kidx=0):
        if not self.enable:
            return
        srd(A, 16, sws, 0x100000, PROF_OFF + kidx * 0x40000)
        A("v_lshrrev_b32 v2, 6, v0")
        A("v_lshlrev_b32 v2, 6, v2")
        A("s_lshl_b32 s96, s2, 8")
        A("v_add_u32 v2, s96, v2")
        for i in range(n):
            A(f"v_mov_b32 v3, s{84+i}")
            A(f"buffer_store_dword v3, v2, s[16:19], 0 offen offset:{4*i}")
        A("s_memrealtime s[96:97]")
        A("s_waitcnt lgkmcnt(0)")
        A("v_mov_b32 v3, s96")
        A(f"buffer_store_dword v3, v2, s[16:19], 0 offen offset:52")
        A("s_waitcnt vmcnt(0)")

def k1(A, kern, stamp_en):
    A(khead(kern))
    ex = "L_exit_" + kern
    stamp = Stamp(stamp_en)
    p1.prologue_common(A, ex, stamp)
    labs = {vv: A.new_label("var" + vv) for vv in ("A0", "A1", "B0", "B1")}
    lb = A.new_label("typeB")
    A(f"s_cmp_ge_u32 s{p1.sC}, 12")
    A(f"s_cbranch_scc1 {lb}")
    A(f"s_cmp_eq_u32 s{p1.sCH}, 1")
    A(f"s_cbranch_scc1 {labs['A1']}")
    A(f"s_branch {labs['A0']}")
    A.label(lb)
    A(f"s_cmp_eq_u32 s{p1.sCH}, 1")
    A(f"s_cbranch_scc1 {labs['B1']}")
    A(f"s_branch {labs['B0']}")
    for vv in ("A0", "A1", "B0", "B1"):
        A.label(labs[vv])
        p1.prologue_var(A, vv, stamp)
        p1.loop(A, vv, stamp)
        stamp(A, 2)
        p1.epi_stats(A, vv)
        stamp(A, 3)
        p1.epilogue(A, vv)
        if not p1.OPT["probe"]: stamp(A, 4)
        A("s_waitcnt vmcnt(0)")
        if not p1.OPT["probe"]: stamp(A, 5)
        stamp.real(A, 7)
        stamp.flush(A, 12, p1.sWS)
        A("s_endpgm")
    A.label(ex)
    A("s_endpgm")

def kP(A, kern, stamp_en):
    p1.FUSED = True
    A(khead(kern))
    ex = "L_exit_" + kern
    st = Stamp(stamp_en)
    class S2:
        def __call__(self, A, idx):
            if idx in (0, 1): st(A, idx)
        def real(self, A, idx): pass
    p1.prologue_common(A, ex, S2())
    labs = {vv: A.new_label("var" + vv) for vv in ("A0", "A1", "B0", "B1")}
    lb = A.new_label("typeB")
    lph2 = A.new_label("phase2")
    A(f"s_cmp_ge_u32 s{p1.sC}, 12")
    A(f"s_cbranch_scc1 {lb}")
    A(f"s_cmp_eq_u32 s{p1.sCH}, 1")
    A(f"s_cbranch_scc1 {labs['A1']}")
    A(f"s_branch {labs['A0']}")
    A.label(lb)
    A(f"s_cmp_eq_u32 s{p1.sCH}, 1")
    A(f"s_cbranch_scc1 {labs['B1']}")
    A(f"s_branch {labs['B0']}")
    for vv in ("A0", "A1", "B0", "B1"):
        A.label(labs[vv])
        p1.prologue_var(A, vv, S2())
        p1.loop(A, vv, S2())
        st(A, 2)
        A(f"v_readfirstlane_b32 s{p1.sTag}, v{p1.vEpoch}")
        p2f.wave_consts(A)
        A(f"s_mul_i32 s{p1.sTag}, s{p1.sTag}, 0x9e3779b1")
        A(f"s_add_u32 s{p1.sTag}, s{p1.sTag}, 0x7f4a7c15")
        for j in range(21, 36):
            A(p2f.w2_dma_unit(0, j, vreg=p1.vW2pat, tmp=p1.sTmpW2))
        p1.epi_stats(A, vv)
        st(A, 3)
        p1.epilogue(A, vv, sc=" sc1")
        st(A, 4)
        srd(A, p1.SRD_FLG, p1.sWS, p1.FLG_BYTES, p1.FLG_OFF)
        A(f"s_lshl_b32 s48, s{p1.sR}, 1")
        A(f"s_add_u32 s48, s48, s{p1.sRH}")
        A(f"s_lshl_b32 s48, s48, 7")
        A(f"s_lshl_b32 s49, s{p1.sC}, 3")
        A(f"s_add_u32 s48, s48, s49")
        A(f"s_add_u32 s48, s48, {4*int(vv[1])}")
        A(f"v_mov_b32 v2, s48")
        A(f"v_mov_b32 v3, s{p1.sTag}")
        A("s_waitcnt vmcnt(0)")
        A(f"buffer_store_dword v3, v2, {s(p1.SRD_FLG,4)}, 0 offen sc1")
        st(A, 5)
        if vv != "B1":
            A(f"s_branch {lph2}")
    A.label(lph2)
    lred = A.new_label("reducer")
    lend = A.new_label("end")
    A(f"s_cmp_eq_u32 s{p1.sNT}, 7")
    A(f"s_cbranch_scc1 {lred}")
    p2f.phase2(A, " sc1", st, ex)
    A(f"s_branch {lend}")
    A.label(lred)
    p2f.reducer(A, " sc1", st)
    A.label(lend)
    st(A, 11)
    st.flush(A, 12, p1.sWS)
    A.label(ex)
    A("s_endpgm")


def k2(A, kern, stamp_en):
    A(khead(kern))
    ex = "L_exit_" + kern
    A("s_cmp_ge_u32 s2, 16")
    A(f"s_cbranch_scc1 {ex}")
    A("s_load_dwordx2 s[12:13], s[0:1], 72")
    A("s_waitcnt lgkmcnt(0)")
    p2.kv_reduce(A, 2, 12, "")
    A("s_waitcnt vmcnt(0)")
    A.label(ex)
    A("s_endpgm")

def k3(A, kern, stamp_en):
    A(khead(kern))
    ex = "L_exit_" + kern
    stamp = Stamp(stamp_en)
    A("s_cmp_ge_u32 s2, 224")
    A(f"s_cbranch_scc1 {ex}")
    A("s_load_dwordx2 s[4:5], s[0:1], 0")
    A("s_load_dwordx2 s[6:7], s[0:1], 16")
    A("s_load_dwordx2 s[8:9], s[0:1], 48")
    A("s_load_dwordx2 s[10:11], s[0:1], 56")
    A("s_load_dwordx2 s[12:13], s[0:1], 72")
    stamp(A, 0)
    stamp.real(A, 6)
    A(f"v_and_b32 v{p2.vLane}, 63, v0")
    A("v_lshrrev_b32 v2, 6, v0")
    p2.setup_ids(A)
    A(f"v_readfirstlane_b32 s{p2.sW2}, v2")
    A("s_waitcnt lgkmcnt(0)")
    p2.setup(A)
    p2.w2_dma(A, 0)
    A("s_waitcnt vmcnt(0)")
    stamp(A, 1)
    for kk in range(18):
        A.ext(p2.w2_read(kk, p2.aW2 + 8 * kk))
    A("s_waitcnt lgkmcnt(0)")
    p2.w2_dma(A, 1)
    issued, nxt = p2.main_body(A, "")
    stamp(A, 2)
    p2.attention_and_finish(A, "", issued, nxt, None, stamp)
    A("s_waitcnt vmcnt(0)")
    stamp(A, 4)
    stamp(A, 5)
    stamp.real(A, 7)
    stamp.flush(A, 12, 12, 1)
    A.label(ex)
    A("s_endpgm")

def main():
    ap = argparse.ArgumentParser()
    ap.add_argument("--out", default="cdna_kernels/" + NAME + ".s")
    ap.add_argument("--variant", default="k1")
    ap.add_argument("--prof", action="store_true")
    ap.add_argument("--opt", default="")
    ap.add_argument("--pre2", type=int, default=18)
    ap.add_argument("--lp1", default="")
    ap.add_argument("--lp2", default="")
    ap.add_argument("--dma", default="")
    args = ap.parse_args()
    for o in args.opt.split(","):
        if o: p1.OPT[o] = True
    if args.lp1: p1.OPTS["lp1"] = [int(c) for c in args.lp1]
    if args.lp2: p1.OPTS["lp2"] = [int(c) for c in args.lp2]
    if args.dma:
        a_, b_, c_, d_ = args.dma.split(",")
        h = lambda z: [int(c, 16) for c in z]
        p1.DMA1[0], p1.DMA2[0], p1.DMA1[1], p1.DMA2[1] = h(a_), h(b_), h(c_), h(d_)
    A = Asm()
    kerns = []
    hdr = []
    if args.variant == "k1":
        kn = NAME + "_kernel"
        hdr.append(f"; @launch kernel={kn} grid=(256,1,1) block=(256,1,1) lds=163840")
        A('.amdgcn_target "amdgcn-amd-amdhsa--gfx950"')
        A(".text")
        k1(A, kn, args.prof)
        kerns.append(kn)
    if args.variant == "P":
        kn = NAME + "_kernel"
        hdr.append(f"; @launch kernel={kn} grid=(256,1,1) block=(256,1,1) lds=163840")
        A('.amdgcn_target "amdgcn-amd-amdhsa--gfx950"')
        A(".text")
        p2f.OPT["pre2"] = args.pre2
        kP(A, kn, args.prof)
        kerns.append(kn)
    if args.variant == "s3":
        kn = NAME + "_kernel"
        hdr.append(f"; @launch kernel={kn} grid=(256,1,1) block=(256,1,1) lds=163840")
        hdr.append(f"; @launch kernel=kvred_kernel grid=(16,1,1) block=(256,1,1) lds=0")
        hdr.append(f"; @launch kernel=ph2_kernel grid=(224,1,1) block=(256,1,1) lds=163840")
        A('.amdgcn_target "amdgcn-amd-amdhsa--gfx950"')
        A(".text")
        k1(A, kn, args.prof)
        k2(A, "kvred_kernel", False)
        k3(A, "ph2_kernel", args.prof)
        kerns += [kn, "kvred_kernel", "ph2_kernel"]
    txt = "\n".join(hdr) + "\n" + A.text() + '.section .rodata,"a"\n.p2align 6\n' + "".join(desc(k) for k in kerns)
    open(args.out, "w").write(txt)
    print("wrote", args.out, len(txt), "bytes")
main()
```

```python
from common import *

WSLOT = 20512
NPRE = 3
NSLOT = 4
XBASE = NSLOT * WSLOT
assert XBASE % 128 == 0
XSLOT = 16384
SCR = XBASE + 3 * XSLOT
NEGM = SCR
RSTD = SCR + 512
CSX = SCR + 1024
SPARE = SCR + 3584
KOFF, VOFF, QOFF = 16416, 18464, 8224
UOFF = {"A": 8224, "B": 4128}

VAR = {
    "A0": [("F", 0), ("F", 1), ("F", 2), ("F", 3), ("F", 4)],
    "A1": [("F", 5), ("F", 6), ("F", 7), ("K", 0), ("V", 0)],
    "B0": [("F", 0), ("F", 1), ("Q", 0), ("Q", 1), ("Q", 2)],
    "B1": [("F", 2), ("F", 3), ("Q", 3), ("K", 0), ("V", 0)],
}

ACT_OFF = 0
ACT_BYTES = 64 * 144 * 1024
KVP_OFF = 0x1000000
KVP_BYTES = 16 * 32 * 4096
KVF_OFF = 0x1400000
KVF_BYTES = 16 * 2 * 1024

FLG_OFF = 0x1500000
FLG_BYTES = 0x4000
FLGF = 0x1000
EPOCH = 0x2000
FUSED = False
NMAIN = 11

sX, sQKV, sG, sU, sWS = 4, 6, 8, 10, 12
SRD_GU, SRD_QKV, SRD_X, SRD_ACT, SRD_KVP = 16, 20, 24, 28, 32
sR, sC, sW, sRH, sCH = 36, 37, 38, 39, 40
sDlX, sOffGU, sOffQ, sOffX = 41, 42, 43, 44
sSlotW, sSlotX, sMask = 45, 46, 47
sT0, sT1, sT2, sT3 = 48, 49, 50, 51
sL28 = 52
sLO = 54
sMo = 56
sCnt, sD, sDX, sC4, sC6, sRot = 63, 64, 65, 66, 67, 68
sHKV, sTb, sHQ = 69, 70, 71
sWSL, sNEGW, sNEGX = 72, 73, 74
sOffW2, sMT, sNT, sTag = 3, 14, 15, 75
SRD_WD = 76
sTW, sTX, sW5120, sTmpW2 = 80, 81, 82, 83
sWOp, sOUTp = 98, 100
SRD_FLG = 16
vW2pat, vEpoch = 15, 22

vTid, vLane = 0, 1
vDMA = 8
vF1, vF2, vN1, vN2, vX1, vX2 = 16, 17, 18, 19, 20, 21
vSum0, vSum1, vSq0, vSq1 = 24, 25, 26, 27
vU = 28
vXF = 32
vE = 48
vACC = 96
aW = 0
aCS = 40
aSEL = 60

OPT = {"probe": False, "nobar": False, "nokv": False, "nox": False, "nogu": False, "nodma": False, "nomfma": False, "nostats": False, "nolds": False, "nom16": False, "norot": False, "cpf": False}


def acc(t, lt):
    return vACC + 16 * (2 * t + lt)


def xf(b, lt):
    return vXF + 8 * b + 4 * lt


def wf(b, t):
    return aW + 20 * b + 4 * t


def tile_addr(var, t, typ):
    kind, i = VAR[var][t]
    F = vF1 if typ == 1 else vF2
    N = vN1 if typ == 1 else vN2
    if kind == "F":
        return F, 2048 * (i >> 1) + 32 * (i & 1)
    if kind == "Q":
        return N, QOFF + 2048 * i
    return N, (KOFF if kind == "K" else VOFF)


def swapped(var, t):
    return VAR[var][t][0] in "KV"


def uses_n(var):
    return any(k != "F" for k, _ in VAR[var])


def frag_reads(var, buf, typ):
    X = vX1 if typ == 1 else vX2
    R = []
    R.append(f"ds_read_b128 {v(xf(buf,0),4)}, v{X}")
    R.append(f"ds_read_b128 {v(xf(buf,1),4)}, v{X} offset:4096")
    for t in range(5):
        reg, imm = tile_addr(var, t, typ)
        R.append(f"ds_read_b64_tr_b16 {a(wf(buf,t),2)}, v{reg} offset:{imm}")
        R.append(f"ds_read_b64_tr_b16 {a(wf(buf,t)+2,2)}, v{reg} offset:{imm+256}")
    return R


def addr_updates(var, typ):
    F, N, X = (vF1, vN1, vX1) if typ == 1 else (vF2, vN2, vX2)
    U = [f"v_add_u32 v{F}, s{sD}, v{F}"]
    if uses_n(var):
        U.append(f"v_add_u32 v{N}, s{sD}, v{N}")
    U.append(f"v_xad_u32 v{X}, v{X}, 64, s{sDX}")
    return U


def mfmas(var, buf):
    M = []
    for t in range(5):
        for lt in range(2):
            A_ = a(wf(buf, t), 4)
            B_ = v(xf(buf, lt), 4)
            if swapped(var, t):
                A_, B_ = B_, A_
            D = v(acc(t, lt), 16)
            M.append(f"v_mfma_f32_32x32x16_bf16 {D}, {A_}, {B_}, {D}")
    return M


def mfma16(buf):
    return [f"v_mfma_f32_16x16x32_bf16 {a(aCS+4*t,4)}, {a(aSEL,4)}, {a(wf(buf,t),4)}, {a(aCS+4*t,4)}" for t in range(5)]


def stats(ch, buf):
    r0 = xf(buf, ch)
    S = []
    for i in range(4):
        lo, hi = vU + 2 * (i & 1), vU + 2 * (i & 1) + 1
        S.append(f"v_lshlrev_b32 v{lo}, 16, v{r0+i}")
        S.append(f"v_and_b32 v{hi}, s{sMask}, v{r0+i}")
        S.append(f"v_add_f32 v{vSum0}, v{vSum0}, v{lo}")
        S.append(f"v_add_f32 v{vSum1}, v{vSum1}, v{hi}")
        S.append(f"v_fmac_f32 v{vSq0}, v{lo}, v{lo}")
        S.append(f"v_fmac_f32 v{vSq1}, v{hi}, v{hi}")
    return S


UNITS = {
    "A0": [("GU", 0, 0), ("GU", 0, 1), ("GU", 0, 2), ("GU", 0, 3), ("GU", 1, 0), ("GU", 1, 1), ("GU", 1, 2)],
    "A1": [("X", 0), ("X", 1), ("X", 2), ("X", 3), ("GU", 1, 3), ("KV", 0), ("KV", 1)],
    "B0": [("GU", 0, 0), ("GU", 0, 1), ("GU", 1, 0), ("GU", 1, 1), ("Q", 0), ("Q", 1), ("Q", 2)],
    "B1": [("X", 0), ("X", 1), ("X", 2), ("X", 3), ("Q", 3), ("KV", 0), ("KV", 1)],
}


def dma_unit(var, u):
    kind = UNITS[var][u][0]
    base = sSlotX if kind == "X" else sSlotW
    srd_, so = {"GU": (SRD_GU, sOffGU), "Q": (SRD_QKV, sOffQ), "KV": (SRD_QKV, sOffQ), "X": (SRD_X, sOffX)}[kind]
    m = f"s_add_u32 m0, s{base}, s{sMo+u}"
    l = f"buffer_load_dwordx4 v{vDMA+u}, {s(srd_,4)}, s{so} offen lds"
    return m, l


def adv_x():
    return [f"s_sub_u32 s{sDlX}, 128, s{sDlX}",
            f"s_add_u32 s{sOffX}, s{sOffX}, s{sDlX}\ns_cmp_eq_u32 s{sOffX}, 896\ns_cselect_b32 s{sOffX}, 0, s{sOffX}",
            f"s_add_u32 s{sSlotX}, s{sSlotX}, 8192\ns_cmp_eq_u32 s{sSlotX}, {XBASE+3*XSLOT}\ns_cselect_b32 s{sSlotX}, {XBASE}, s{sSlotX}"]


def adv(var):
    kinds = {u[0] for u in UNITS[var]}
    return (adv_x() if "X" in kinds else []) + adv_w(var)


def adv_w(var):
    kinds = {u[0] for u in UNITS[var]}
    L = []
    if "GU" in kinds:
        L.append(f"s_add_u32 s{sOffGU}, s{sOffGU}, {32*3584}\ns_cmp_eq_u32 s{sOffGU}, {448*3584}\ns_cselect_b32 s{sOffGU}, 0, s{sOffGU}")
    if "Q" in kinds or "KV" in kinds:
        L.append(f"s_add_u32 s{sOffQ}, s{sOffQ}, {32*2688}\ns_cmp_eq_u32 s{sOffQ}, {448*2688}\ns_cselect_b32 s{sOffQ}, 0, s{sOffQ}")
    L.append(f"s_add_u32 s{sSlotW}, s{sSlotW}, {WSLOT}\ns_cmp_eq_u32 s{sSlotW}, {NSLOT*WSLOT}\ns_cselect_b32 s{sSlotW}, 0, s{sSlotW}")
    return L


def prologue_common(A, exit_label, stamp=None):
    A(f"s_cmp_ge_u32 s2, 256")
    A(f"s_cbranch_scc1 {exit_label}")
    A(f"s_load_dwordx4 {s(sX,4)}, s[0:1], 0")
    A(f"s_load_dwordx4 {s(sG,4)}, s[0:1], 32")
    A(f"s_load_dwordx2 {s(sWS,2)}, s[0:1], 72")
    if FUSED:
        A(f"s_load_dwordx4 {s(SRD_WD,4)}, s[0:1], 48")
        A(f"s_load_dwordx2 {s(sWOp,2)}, s[0:1], 16")
    A(f"v_and_b32 v{vLane}, 63, v{vTid}")
    if OPT["cpf"]:
        lpc = A.new_label("pc")
        A(f"s_getpc_b64 s[90:91]")
        A.label(lpc)
        A(f"s_bfe_u32 s92, s2, 0x10003")
        A(f"s_lshl_b32 s92, s92, 15")
        A(f"v_lshlrev_b32 v2, 7, v{vTid}")
        A(f"v_add_u32 v2, s92, v2")
        A(f"v_min_u32 v2, L_codeend-{lpc}-4, v2")
        A(f"global_load_dword v23, v2, s[90:91]")
    if stamp:
        stamp(A, 0)
        stamp.real(A, 6)
    A(f"v_lshrrev_b32 v2, 6, v{vTid}")
    A(f"s_and_b32 s{sT0}, s2, 1")
    A(f"s_lshl_b32 s{sT0}, s{sT0}, 3")
    A(f"s_bfe_u32 s{sT1}, s2, 0x30003")
    A(f"s_add_u32 s{sR}, s{sT0}, s{sT1}")
    A(f"v_readfirstlane_b32 s{sW}, v2")
    A(f"s_bfe_u32 s{sT0}, s2, 0x20001")
    A(f"s_lshl_b32 s{sT0}, s{sT0}, 2")
    A(f"s_lshr_b32 s{sT2}, s2, 6")
    A(f"s_add_u32 s{sC}, s{sT0}, s{sT2}")
    A(f"s_lshr_b32 s{sRH}, s{sW}, 1")
    A(f"s_and_b32 s{sCH}, s{sW}, 1")
    A(f"s_mov_b32 s{sMask}, 0xffff0000")
    if OPT["norot"]:
        A(f"s_mov_b32 s{sRot}, 0")
    else:
        A(f"s_lshl_b32 s{sT2}, s{sT2}, 1")
        A(f"s_add_u32 s{sRot}, s{sT1}, s{sT2}")
        A(f"s_cmp_ge_u32 s{sRot}, 7")
        A(f"s_cselect_b32 s{sT0}, 7, 0")
        A(f"s_sub_u32 s{sRot}, s{sRot}, s{sT0}")

    A(f"v_lshrrev_b32 v2, 2, v{vLane}")
    A(f"v_and_b32 v3, 3, v{vLane}")
    A(f"v_lshlrev_b32 v3, 4, v3")
    A(f"v_mul_u32_u24 v4, 3584, v2")
    A(f"v_add_u32 v4, v4, v3")
    A(f"v_mul_u32_u24 v5, 2688, v2")
    A(f"v_add_u32 v5, v5, v3")


def fused_setup(A):
    A(f"s_mov_b32 s{sOUTp}, s{SRD_WD+2}")
    A(f"s_mov_b32 s{sOUTp+1}, s{SRD_WD+3}")
    srd(A, SRD_WD, SRD_WD, 1792 * 896)
    A(f"s_and_b32 s{sT0}, s2, 7")
    A(f"s_lshl_b32 s{sT0}, s{sT0}, 2")
    A(f"s_bfe_u32 s{sT1}, s2, 0x20003")
    A(f"s_add_u32 s{sMT}, s{sT0}, s{sT1}")
    A(f"s_lshr_b32 s{sNT}, s2, 5")
    A(f"v_lshrrev_b32 v2, 3, v{vLane}")
    A(f"v_mul_u32_u24 v3, 896, v2")
    A(f"v_bfe_u32 v4, v{vLane}, 4, 1")
    A(f"v_lshlrev_b32 v4, 2, v4")
    A(f"v_and_b32 v5, 7, v{vLane}")
    A(f"v_xor_b32 v5, v5, v4")
    A(f"v_lshlrev_b32 v5, 4, v5")
    A(f"s_lshl_b32 s{sT0}, s{sNT}, 7")
    A(f"v_add3_u32 v{vW2pat}, v3, v5, s{sT0}")
    A(f"s_mul_i32 s{sOffW2}, s{sW}, {28*16*896}")
    A(f"s_mul_i32 s{sW5120}, s{sW}, 5120")
    A(f"s_add_u32 s{sTW}, s{sW5120}, {2*WSLOT}")
    A(f"s_lshl_b32 s{sTX}, s{sW}, 11")
    A(f"s_add_u32 s{sTX}, s{sTX}, {XBASE + 3*8192}")


def tail_dma(u):
    if u < 5:
        m = f"s_add_u32 m0, s{sTW}, {1024*u}"
    else:
        m = f"s_add_u32 m0, s{sTX}, {1024*(u-5)}"
    m += f"\ns_add_u32 s{sTmpW2}, s{sOffW2}, {u*7168}"
    l = f"buffer_load_dwordx4 v{vW2pat}, {s(SRD_WD,4)}, s{sTmpW2} offen lds"
    return m, l


def tail_adv():
    return [f"s_add_u32 s{sTW}, s{sTW}, {WSLOT}\ns_cmp_eq_u32 s{sCnt}, {NMAIN+2}\ns_cselect_b32 s{sTW}, s{sW5120}, s{sTW}",
            f"s_add_u32 s{sTX}, s{sTX}, 8192",
            f"s_add_u32 s{sOffW2}, s{sOffW2}, {7*7168}"]


def prologue_var(A, var, stamp=None):
    typ, ch = var[0], int(var[1])
    if typ == "A":
        A(f"s_lshl_b32 s{sTb}, s{sC}, 3")
        A(f"s_lshl_b32 s{sT2}, s{sC}, 8")
        A(f"s_lshl_b32 s{sT0}, s{sC}, 1")
        A(f"s_sub_u32 s{sT0}, s{sT0}, 7")
        A(f"s_cmp_lt_u32 s{sC}, 8")
        A(f"s_cselect_b32 s{sHKV}, s{sC}, s{sT0}")
        A(f"s_mov_b32 s{sHQ}, 0")
    else:
        A(f"s_sub_u32 s{sT0}, s{sC}, 12")
        A(f"s_lshl_b32 s{sTb}, s{sT0}, 2")
        A(f"s_add_u32 s{sTb}, s{sTb}, 96")
        A(f"s_lshl_b32 s{sT2}, s{sT0}, 7")
        A(f"s_add_u32 s{sT2}, s{sT2}, 3072")
        A(f"s_lshl_b32 s{sHKV}, s{sT0}, 1")
        A(f"s_add_u32 s{sHKV}, s{sHKV}, 8")
        A(f"s_lshl_b32 s{sHQ}, s{sT0}, 2")
    units = UNITS[var]
    kinds = {u[0] for u in units}
    if "X" in kinds:
        A(f"v_lshrrev_b32 v6, 3, v{vLane}")
        A(f"v_mul_u32_u24 v6, 896, v6")
        A(f"s_mul_i32 s{sT0}, s{sR}, {128*896}")
        A(f"s_mul_i32 s{sT1}, s{sRH}, {32*896}")
        A(f"s_add_u32 s{sT0}, s{sT0}, s{sT1}")
        A(f"v_add_u32 v6, s{sT0}, v6")
        A(f"v_lshrrev_b32 v7, 4, v{vLane}")
        A(f"v_xor_b32 v7, v7, v{vLane}")
        A(f"v_and_b32 v7, 7, v7")
        A(f"v_lshlrev_b32 v7, 4, v7")
    for u, un in enumerate(units):
        d = vDMA + u
        if un[0] == "GU":
            _, b, p = un
            A(f"s_add_u32 s{sT0}, s{sT2}, {64*p + 16*3584*b}")
            A(f"v_add_u32 v{d}, s{sT0}, v4")
            A(f"s_mul_i32 s{sMo+u}, s{sRH}, {UOFF[typ]}")
            A(f"s_add_u32 s{sMo+u}, s{sMo+u}, {2048*p + 1024*b}")
        elif un[0] == "Q":
            q = un[1]
            A(f"s_add_u32 s{sT0}, s{sHQ}, {q}")
            A(f"s_mul_i32 s{sT0}, s{sT0}, 56")
            A(f"s_mul_i32 s{sT1}, s{sRH}, {16*2688}")
            A(f"s_add_u32 s{sT0}, s{sT0}, s{sT1}")
            A(f"v_add_u32 v{d}, s{sT0}, v5")
            A(f"s_lshl_b32 s{sMo+u}, s{sRH}, 10")
            A(f"s_add_u32 s{sMo+u}, s{sMo+u}, {QOFF + 2048*q}")
        elif un[0] == "KV":
            b = un[1]
            A(f"s_mul_i32 s{sT0}, s{sHKV}, 56")
            A(f"s_mul_i32 s{sT1}, s{sRH}, 896")
            A(f"s_add_u32 s{sT0}, s{sT0}, s{sT1}")
            A(f"s_add_u32 s{sT0}, s{sT0}, {896 + 16*2688*b}")
            A(f"v_add_u32 v{d}, s{sT0}, v5")
            A(f"s_lshl_b32 s{sMo+u}, s{sRH}, 11")
            A(f"s_add_u32 s{sMo+u}, s{sMo+u}, {KOFF + 1024*b}")
        else:
            uu = un[1]
            if uu & 1:
                A(f"v_xor_b32 v{d}, 64, v7")
            else:
                A(f"v_mov_b32 v{d}, v7")
            A(f"v_add_u32 v{d}, v{d}, v6")
            if uu:
                A(f"v_add_u32 v{d}, {uu*8*896}, v{d}")
            A(f"s_lshl_b32 s{sMo+u}, s{sRH}, 12")
            A(f"s_add_u32 s{sMo+u}, s{sMo+u}, {1024*uu}")
    A(f"s_mov_b32 s{sSlotW}, 0")
    A(f"s_mov_b32 s{sSlotX}, {XBASE}")
    A(f"s_mul_i32 s{sOffGU}, s{sRot}, {64*3584}")
    A(f"s_mul_i32 s{sOffQ}, s{sRot}, {64*2688}")
    A(f"s_lshl_b32 s{sOffX}, s{sRot}, 7")
    A(f"s_mov_b32 s{sDlX}, {(128 - 64*896) & 0xffffffff}")
    A("s_waitcnt lgkmcnt(0)")
    if "GU" in kinds:
        lab_u, lab_d = A.new_label("wu"), A.new_label("wd")
        A(f"s_cmp_eq_u32 s{sRH}, 1")
        A(f"s_cselect_b32 s{sG}, s{sU}, s{sG}")
        A(f"s_cselect_b32 s{sG+1}, s{sU+1}, s{sG+1}")
        srd(A, SRD_GU, sG, 448 * 3584)
    if "X" in kinds:
        srd(A, SRD_X, sX, 2048 * 896)
        for u in range(4):
            m, l = dma_unit(var, u)
            A(m)
            A("s_nop 0")
            A(l)
        for it in adv_x():
            A(it)
    if "Q" in kinds or "KV" in kinds:
        srd(A, SRD_QKV, sQKV, 448 * 2688)
    if stamp:
        stamp(A, 8)
    zero = [f"v_mov_b32 v{vACC+i}, 0" for i in range(160)] + [f"v_accvgpr_write_b32 a{aCS+i}, 0" for i in range(20)]
    zero += [f"v_mov_b32 v{r}, 0" for r in (vSum0, vSum1, vSq0, vSq1)]
    def group(st):
        for u in range(7):
            m, l = dma_unit(var, u)
            A(m)
            A(zero.pop() if (st == 1 and zero) else "s_nop 0")
            A(l)
            if st == 1:
                for _ in range(3):
                    A(zero.pop())
        if st < NPRE - 1 or ch == 0:
            for it in adv(var):
                A(it)
        else:
            for it in adv_x():
                A(it)
    for st in range(NPRE - 1):
        group(st)
        if OPT["probe"] and st == 0:
            stamp(A, 5)
            A("s_waitcnt vmcnt(0)")
            stamp(A, 4)
    if stamp:
        stamp(A, 9)
    srd(A, SRD_ACT, sWS, ACT_BYTES, ACT_OFF)
    srd(A, SRD_KVP, sWS, KVP_BYTES, KVP_OFF)
    if FUSED:
        fused_setup(A)
    A(f"v_lshrrev_b32 v2, 5, v{vLane}")
    A(f"v_lshlrev_b32 v2, 3, v2")
    A(f"v_bfe_u32 v5, v{vLane}, 2, 2")
    A(f"v_add_u32 v2, v2, v5")
    A(f"v_bfe_u32 v3, v{vLane}, 4, 1")
    A(f"v_and_b32 v4, 3, v{vLane}")
    A(f"v_lshlrev_b32 v4, 3, v4")
    A(f"s_lshl_b32 s{sT0}, s{sRH}, 10")
    A(f"s_sub_u32 s{sT1}, 1024, s{sT0}")
    A(f"v_lshl_add_u32 v6, v2, 6, v4")
    A(f"v_mul_u32_u24 v7, {UOFF[typ]}, v3")
    A(f"v_add3_u32 v{vF1}, v6, v7, s{sT0}")
    A(f"v_add3_u32 v{vF2}, v6, v7, s{sT1}")
    A(f"v_lshlrev_b32 v7, 5, v3")
    A(f"v_add3_u32 v{vN1}, v6, v7, s{sT0}")
    A(f"v_add3_u32 v{vN2}, v6, v7, s{sT1}")
    A(f"v_and_b32 v6, 31, v{vLane}")
    A(f"v_lshlrev_b32 v6, 7, v6")
    A(f"s_lshl_b32 s{sT0}, s{sRH}, 13")
    A(f"s_add_u32 s{sT0}, s{sT0}, {XBASE}")
    A(f"v_lshrrev_b32 v7, 5, v{vLane}")
    A(f"v_bfe_u32 v5, v{vLane}, 1, 3")
    A(f"v_xor_b32 v7, v7, v5")
    A(f"s_lshl_b32 s{sT1}, s{sRH}, 1")
    A(f"v_xor_b32 v3, s{sT1}, v7")
    A(f"v_lshlrev_b32 v3, 4, v3")
    A(f"v_add3_u32 v{vX1}, v6, v3, s{sT0}")
    A(f"v_xor_b32 v3, 32, v3")
    A(f"v_add3_u32 v{vX2}, v6, v3, s{sT0}")
    A(f"v_lshrrev_b32 v2, 2, v{vLane}")
    A(f"v_lshrrev_b32 v3, 4, v{vLane}")
    A(f"v_xor_b32 v2, v2, v3")
    A(f"v_and_b32 v2, 1, v2")
    A(f"v_cmp_eq_u32 vcc, 0, v2")
    A(f"v_mov_b32 v3, 0x3f803f80")
    A(f"v_mov_b32 v4, 0")
    A(f"v_cndmask_b32 v3, v4, v3, vcc")
    for i in range(4):
        A(f"v_accvgpr_write_b32 a{aSEL+i}, v3")
    for z in zero:
        A(z)
    A(f"s_mov_b32 s{sWSL}, {WSLOT}")
    A(f"s_mov_b32 s{sNEGW}, {(-(NSLOT-1)*WSLOT) & 0xffffffff}")
    A(f"s_mov_b32 s{sNEGX}, {(-2*XSLOT) & 0xffffffff}")
    A(f"s_mov_b32 s{sD}, {WSLOT}")
    A(f"s_mov_b32 s{sDX}, 0")
    A(f"s_mov_b32 s{sC4}, 0")
    A(f"s_mov_b32 s{sC6}, 0")
    A(f"s_mov_b32 s{sCnt}, 0")
    if stamp:
        stamp(A, 11)
    group(NPRE - 1)
    if FUSED:
        srd(A, 48, sWS, FLG_BYTES, FLG_OFF)
        A(f"v_mov_b32 v2, {EPOCH}")
        A(f"buffer_load_dword v{vEpoch}, v2, s[48:51], 0 offen sc1")


def filt(lst):
    out = []
    for item in lst:
        for l in item.split("\n"):
            if OPT["nodma"] and l.startswith("buffer_load"): continue
            if OPT["nokv"] and l.startswith("buffer_load") and f"s[{SRD_QKV}:" in l: continue
            if OPT["nox"] and l.startswith("buffer_load") and f"s[{SRD_X}:" in l: continue
            if OPT["nogu"] and l.startswith("buffer_load") and f"s[{SRD_GU}:" in l: continue
            if OPT["nomfma"] and l.startswith("v_mfma"): continue
            if OPT["nom16"] and l.startswith("v_mfma_f32_16x16"): continue
            if OPT["nolds"] and l.startswith("ds_read"): continue
            if OPT["nostats"] and (l.startswith("v_lshlrev_b32 v2") or l.startswith("v_lshlrev_b32 v3") or l.startswith("v_and_b32") or l.startswith("v_add_f32") or l.startswith("v_fmac")): continue
            out.append(l)
    return out


def delta_calc():
    return [
        f"s_add_u32 s{sC4}, s{sC4}, 1",
        f"s_and_b32 s{sC4}, s{sC4}, {NSLOT-1}",
        f"s_cmp_eq_u32 s{sC4}, {NSLOT-1}\ns_cselect_b32 s{sD}, s{sNEGW}, s{sWSL}",
        f"s_add_u32 s{sC6}, s{sC6}, 1",
        f"s_cmp_eq_u32 s{sC6}, 6\ns_cselect_b32 s{sC6}, 0, s{sC6}",
        f"s_and_b32 s{sT3}, s{sC6}, 1",
        f"s_lshl_b32 s{sDX}, s{sT3}, 14",
        f"s_cmp_eq_u32 s{sC6}, 5\ns_cselect_b32 s{sDX}, s{sNEGX}, s{sDX}",
    ]


def nins(item):
    return len(item.split("\n"))


def sched(M, caps, lds, ldsplan, dma, flow, pin=None):
    n = len(M)
    slots = [[] for _ in range(n)]
    k = 0
    for i, c in enumerate(ldsplan):
        for _ in range(c):
            if k < len(lds):
                slots[i].append(lds[k]); k += 1
    assert k == len(lds)
    for i, items in (pin or {}).items():
        slots[i] += items
    used = [sum(nins(f) for f in slots[i]) + (nins(dma[i][0]) + 1 if i in dma else 0) for i in range(n)]
    rem = [max(0, caps[i] - used[i]) for i in range(n)]
    tot_rem = sum(rem)
    tot_flow = sum(nins(f) for f in flow)
    scale = min(1.0, tot_flow / max(1, tot_rem))
    cum_cap = 0.0
    placed = 0
    fi = 0
    for i in range(n):
        cum_cap += rem[i] * scale
        while fi < len(flow) and placed + nins(flow[fi]) / 2.0 <= cum_cap + 1e-9:
            slots[i].append(flow[fi]); placed += nins(flow[fi]); fi += 1
    while fi < len(flow):
        slots[n - 1].append(flow[fi]); fi += 1
    out = []
    for i in range(n):
        out.append(M[i])
        body = list(slots[i])
        if i in dma:
            m, l = dma[i]
            if not body:
                body = ["s_nop 0"]
            body = [m] + body + [l]
        out += body
    return out


DMA1 = {0: [0, 3, 6], 1: [2, 5, 8]}
DMA2 = {0: [0, 3, 7, 11], 1: [1, 5, 9, 13]}
LDSP1 = [2, 2, 2, 2, 2, 2]
LDSP2 = [2, 2, 1, 2, 2, 1, 2]


def stage(A, var, dma_fn, last_items=(), tail=False):
    ch = int(var[1])
    n1 = len(DMA1[ch])
    A("s_waitcnt lgkmcnt(0)")
    M = mfmas(var, 0)
    dma = {sl: dma_fn(u) for u, sl in enumerate(DMA1[ch])}
    flow = (adv_w(var) if (ch == 1 and not tail) else []) + stats(ch, 0) + addr_updates(var, 2)
    seq = sched(M, [7] * 10, frag_reads(var, 1, 2), OPTS["lp1"], dma, flow)
    A.ext(filt(seq))
    vm = 7 + n1
    if OPT["nokv"] or OPT["nox"] or OPT["nogu"]:
        vm = 0
    A(f"s_waitcnt vmcnt({vm}) lgkmcnt(0)" if not OPT["nodma"] else "s_waitcnt lgkmcnt(0)")
    if not OPT["nobar"]:
        A("s_barrier")
    M = mfmas(var, 1)
    M16 = mfma16(1)
    seq = []
    caps = []
    for i in range(10):
        seq.append(M[i]); caps.append(7)
        if i % 2 == 1:
            seq.append(M16[i // 2]); caps.append(3)
    dma = {sl: dma_fn(n1 + u) for u, sl in enumerate(DMA2[ch])}
    flow = delta_calc() + stats(ch, 1) + addr_updates(var, 1)
    pin = {}
    def addpin(sl, items):
        pin.setdefault(min(sl, 14), []).extend(items)
    if tail:
        L = DMA2[ch][-1]
        addpin(L + 1, list(last_items) + tail_adv())
        last_items = ()
    elif ch == 0:
        aw = adv_w(var)
        L = DMA2[ch][-1]
        assert L < 14
        addpin(L + 1, aw[:2]); addpin(L + 2, aw[2:])
    else:
        ax = adv_x()
        L = DMA2[ch][3 - n1]
        addpin(L + 1, ax[:2]); addpin(L + 2, ax[2:])
        assert L + 2 < 14
    addpin(14, list(last_items))
    out = sched(seq, caps, frag_reads(var, 0, 1), OPTS["lp2"], dma, flow, pin)
    A.ext(filt(out))


OPTS = {"lp1": LDSP1, "lp2": LDSP2}


def loop(A, var, stamp=None):
    ch = int(var[1])
    if stamp:
        stamp(A, 10)
    A(f"s_waitcnt vmcnt({7*(NPRE-1)})")
    A("s_barrier")
    if stamp:
        stamp(A, 1)
    A.ext(frag_reads(var, 0, 1))
    A(f"v_add_u32 v{vF1}, {WSLOT}, v{vF1}")
    if uses_n(var):
        A(f"v_add_u32 v{vN1}, {WSLOT}, v{vN1}")
    A(f"v_xor_b32 v{vX1}, 64, v{vX1}")
    lab = A.new_label(f"p1loop{var}")
    A.label(lab)
    stage(A, var, lambda u: dma_unit(var, u), [f"s_add_u32 s{sCnt}, s{sCnt}, 1"])
    A(f"s_cmp_lt_u32 s{sCnt}, {NMAIN if FUSED else 14}")
    A(f"s_cbranch_scc1 {lab}")
    if FUSED:
        lab = A.new_label(f"p1tail{var}")
        A.label(lab)
        stage(A, var, tail_dma, [f"s_add_u32 s{sCnt}, s{sCnt}, 1"], tail=True)
        A(f"s_cmp_lt_u32 s{sCnt}, 14")
        A(f"s_cbranch_scc1 {lab}")


def bf16_round(A, dst, src):
    A(f"v_cvt_pk_bf16_f32 v{dst}, v{src}, v{src}")
    A(f"v_and_b32 v{dst}, s{sMask}, v{dst}")


def epi_stats(A, var):
    t0, t1, t2, t3 = vE, vE + 1, vE + 2, vE + 3
    A(f"v_add_f32 v{vSum0}, v{vSum0}, v{vSum1}")
    A(f"v_add_f32 v{vSq0}, v{vSq0}, v{vSq1}")
    A(f"v_mov_b32 v{vSum1}, v{vSum0}")
    A(f"v_mov_b32 v{vSq1}, v{vSq0}")
    for t in range(5):
        A(f"v_accvgpr_read_b32 v{vE+8+t}, a{aCS+4*t}")
    A(f"v_permlane32_swap_b32 v{vSum0}, v{vSum1}")
    A(f"v_permlane32_swap_b32 v{vSq0}, v{vSq1}")
    A(f"s_mul_i32 s{sT0}, s{sW}, 640")
    A(f"v_and_b32 v{t3}, 31, v{vLane}")
    A(f"v_lshlrev_b32 v{t3}, 2, v{t3}")
    A(f"v_add_u32 v{t3}, {CSX}, v{t3}")
    A(f"v_add_u32 v{t2}, s{sT0}, v{t3}")
    for t in range(5):
        A(f"ds_write_b32 v{t2}, v{vE+8+t} offset:{128*t}")
    A(f"v_add_f32 v{vSum0}, v{vSum0}, v{vSum1}")
    A(f"v_add_f32 v{vSq0}, v{vSq0}, v{vSq1}")
    inv = "0x3b124925"
    A(f"v_mul_f32 v{t0}, {inv}, v{vSum0}")
    A(f"v_mul_f32 v{t1}, {inv}, v{vSq0}")
    A(f"v_fma_f32 v{t1}, -v{t0}, v{t0}, v{t1}")
    A(f"v_max_f32 v{t1}, 0, v{t1}")
    bf16_round(A, t1, t1)
    A(f"v_add_f32 v{t1}, 0x3727c5ac, v{t1}")
    bf16_round(A, t1, t1)
    A(f"v_sqrt_f32 v{t1}, v{t1}")
    A(f"v_xor_b32 v{t0}, 0x80000000, v{t0}")
    bf16_round(A, t1, t1)
    A(f"v_rcp_f32 v{t1}, v{t1}")
    A(f"v_cvt_pk_bf16_f32 v{t0}, v{t0}, v{t0}")
    A(f"s_lshl_b32 s{sT0}, s{sW}, 7")
    A(f"v_and_b32 v{t2}, 31, v{vLane}")
    A(f"v_lshlrev_b32 v{t2}, 2, v{t2}")
    A(f"v_add_u32 v{t2}, s{sT0}, v{t2}")
    A(f"v_add_u32 v{t2}, {NEGM}, v{t2}")
    A(f"ds_write_b32 v{t2}, v{t0}")
    A(f"ds_write_b32 v{t2}, v{t1} offset:{RSTD-NEGM}")
    A(f"s_xor_b32 s{sT0}, s{sW}, 2")
    A(f"s_mul_i32 s{sT0}, s{sT0}, 640")
    A(f"v_add_u32 v{t3}, s{sT0}, v{t3}")
    A(f"s_lshl_b32 s{sT0}, s{sRH}, 8")
    A(f"v_and_b32 v{t2}, 31, v{vLane}")
    A(f"v_lshlrev_b32 v{t2}, 2, v{t2}")
    A(f"v_add_u32 v{t2}, s{sT0}, v{t2}")
    A(f"v_add_u32 v{t2}, {NEGM}, v{t2}")
    A(f"v_cmp_gt_u32 {s(sLO,2)}, 32, v{vLane}")
    CF = vE + 24
    for t in range(5):
        for i in range(1, 4):
            A(f"v_mov_b32 v{CF+4*t+i}, 0")
    A("s_waitcnt lgkmcnt(0)")
    for lt in range(2):
        for i in range(1, 4):
            A(f"v_mov_b32 v{xf(0,lt)+i}, 0")
    A("s_barrier")
    for t in range(5):
        A(f"ds_read_b32 v{vE+16+t}, v{t3} offset:{128*t}")
    A(f"ds_read_b32 v{xf(0,0)}, v{t2}")
    A(f"ds_read_b32 v{xf(0,1)}, v{t2} offset:128")
    A(f"ds_read_b32 v{vE+4}, v{t2} offset:{RSTD-NEGM}")
    A(f"ds_read_b32 v{vE+5}, v{t2} offset:{RSTD-NEGM+128}")
    A("s_waitcnt lgkmcnt(4)")
    for t in range(5):
        c_ = vE + 8 + t
        A(f"v_add_f32 v{c_}, v{c_}, v{vE+16+t}")
        A(f"v_cvt_pk_bf16_f32 v{vE+16+t}, v{c_}, v{c_}")
        A(f"v_and_b32 v{vE+16+t}, s{sMask}, v{vE+16+t}")
        A(f"v_sub_f32 v{c_}, v{c_}, v{vE+16+t}")
        A(f"v_cvt_pk_bf16_f32 v{c_}, v{vE+16+t}, v{c_}")
        A(f"v_cndmask_b32 v{CF+4*t}, 0, v{c_}, {s(sLO,2)}")
    A("s_waitcnt lgkmcnt(0)")
    for lt in range(2):
        A(f"v_cndmask_b32 v{xf(0,lt)}, 0, v{xf(0,lt)}, {s(sLO,2)}")
    A("s_nop 1")
    order = sorted(range(5), key=lambda t: {"K": 0, "V": 1, "Q": 2, "F": 3}[VAR[var][t][0]])
    for t in order:
        for lt in range(2):
            A_ = v(CF + 4 * t, 4)
            B_ = v(xf(0, lt), 4)
            if swapped(var, t):
                A_, B_ = B_, A_
            D = v(acc(t, lt), 16)
            A(f"v_mfma_f32_32x32x16_bf16 {D}, {A_}, {B_}, {D}")


LOG2E = "0x3fb8aa3b"
EPS6 = "0x358637bd"


def epi_F(A, t, lt, T_s, sc):
    ac = acc(t, lt)
    r2 = vE + 40 + 2 * lt
    for j in range(0, 8, 2):
        A(f"v_max_f32 v{ac+j}, 0, v{ac+j}")
        A(f"v_max_f32 v{ac+j+1}, 0, v{ac+j+1}")
        A(f"v_pk_mul_f32 {v(ac+8+j,2)}, {v(ac+8+j,2)}, {v(r2,2)}")
        A(f"v_pk_mul_f32 {v(ac+j,2)}, {v(ac+j,2)}, {v(ac+8+j,2)}")
        A(f"v_cvt_pk_bf16_f32 v{ac+j//2}, v{ac+j}, v{ac+j+1}")
    A(f"buffer_store_dwordx4 {v(ac,4)}, v{vE+7}, {s(SRD_ACT,4)}, s{T_s} offen{sc}")


def phi_pair(A, x0, rs_a, rs_b, tmp, out):
    ta, tb = tmp, tmp + 2
    A(f"v_pk_mul_f32 {v(ta,2)}, {v(x0,2)}, {v(rs_a,2)}")
    A(f"v_pk_fma_f32 {v(tb,2)}, {v(x0,2)}, {v(rs_b,2)}, {v(vE+38,2)}")
    A(f"v_exp_f32 v{ta}, v{ta} clamp")
    A(f"v_exp_f32 v{ta+1}, v{ta+1} clamp")
    A(f"v_max_f32 v{tb}, v{vE+38}, v{tb}")
    A(f"v_max_f32 v{tb+1}, v{vE+38}, v{tb+1}")
    A(f"v_pk_add_f32 {v(ta,2)}, {v(ta,2)}, {v(tb,2)}")
    A(f"v_cvt_pk_bf16_f32 v{out}, v{ta}, v{ta+1}")


def epilogue(A, var, sc="", kv_hook=None):
    tiles = VAR[var]
    kinds = [k for k, _ in tiles]
    A(f"v_lshlrev_b32 v{vE+7}, 4, v{vLane}")
    A(f"v_mov_b32 v{vE+38}, {EPS6}")
    A(f"v_mov_b32 v{vE+39}, {EPS6}")
    for lt in range(2):
        A(f"v_mul_f32 v{vE+40+2*lt}, v{vE+4+lt}, v{vE+4+lt}")
        A(f"v_mov_b32 v{vE+41+2*lt}, v{vE+40+2*lt}")
    A(f"s_lshl_b32 s{sT0}, s{sR}, 2")
    A(f"s_lshl_b32 s{sT1}, s{sRH}, 1")
    A(f"s_add_u32 s{sT0}, s{sT0}, s{sT1}")
    A(f"s_mul_i32 s{sT0}, s{sT0}, {144*1024}")
    A(f"s_lshl_b32 s{sT1}, s{sTb}, 10")
    A(f"s_add_u32 s{sT1}, s{sT1}, s{sT0}")
    KV = xf(0, 0)
    if "K" in kinds:
        tK, tV = kinds.index("K"), kinds.index("V")
        RS = vE + 8
        PK = vE + 24
        A(f"v_lshrrev_b32 v{vE}, 5, v{vLane}")
        A(f"v_lshlrev_b32 v{vE}, 4, v{vE}")
        A(f"s_lshl_b32 s{sT2}, s{sRH}, 8")
        A(f"v_add_u32 v{vE}, s{sT2}, v{vE}")
        A(f"v_add_u32 v{vE}, {RSTD}, v{vE}")
        for g in range(4):
            A(f"ds_read_b128 {v(RS+4*g,4)}, v{vE} offset:{32*g}")
        A(f"v_and_b32 v{vE+1}, 31, v{vLane}")
        A(f"v_cmp_eq_u32 {s(sL28,2)}, 28, v{vE+1}")
        for i in range(16):
            A(f"v_mov_b32 v{KV+i}, 0")
        A(f"v_mov_b32 v{vE+2}, {LOG2E}")
        A(f"v_mov_b32 v{vE+3}, {LOG2E}")
        A(f"v_mov_b32 v{vE+46}, 0x3f803f80")
        for lt in range(2):
            A("s_waitcnt lgkmcnt(0)")
            k0, v0_ = acc(tK, lt), acc(tV, lt)
            for j in range(0, 16, 2):
                A(f"v_pk_mul_f32 {v(v0_+j,2)}, {v(v0_+j,2)}, {v(RS+j,2)}")
                A(f"v_pk_mul_f32 {v(k0+j,2)}, {v(k0+j,2)}, {v(RS+j,2)}")
                A(f"v_cvt_pk_bf16_f32 v{v0_+j//2}, v{v0_+j}, v{v0_+j+1}")
            if lt == 0:
                A("s_nop 1")
                for g in range(4):
                    A(f"ds_read_b128 {v(RS+4*g,4)}, v{vE} offset:{128+32*g}")
            for j in range(8):
                A(f"v_cndmask_b32 v{v0_+j}, v{v0_+j}, v{vE+46}, {s(sL28,2)}")
            for j in range(0, 16, 2):
                A(f"v_pk_mul_f32 {v(vE+32,2)}, {v(k0+j,2)}, {v(vE+2,2)}")
                A(f"v_pk_add_f32 {v(vE+34,2)}, {v(k0+j,2)}, {v(vE+38,2)}")
                A(f"v_exp_f32 v{vE+32}, v{vE+32} clamp")
                A(f"v_exp_f32 v{vE+33}, v{vE+33} clamp")
                A(f"v_max_f32 v{vE+34}, v{vE+38}, v{vE+34}")
                A(f"v_max_f32 v{vE+35}, v{vE+38}, v{vE+35}")
                A(f"v_pk_add_f32 {v(vE+32,2)}, {v(vE+32,2)}, {v(vE+34,2)}")
                A(f"v_cvt_pk_bf16_f32 v{PK+j//2}, v{vE+32}, v{vE+33}")
            A("s_nop 1")
            for u in range(2):
                A(f"v_mfma_f32_32x32x16_bf16 {v(KV,16)}, {v(PK+4*u,4)}, {v(v0_+4*u,4)}, {v(KV,16)}")
    else:
        A("s_nop 7")
    pending_kv = "K" in kinds

    def kv_store():
        A(f"s_lshl_b32 s{sT3}, s{sHKV}, 5")
        A(f"s_lshl_b32 s{sT2}, s{sR}, 1")
        A(f"s_add_u32 s{sT3}, s{sT3}, s{sT2}")
        A(f"s_add_u32 s{sT3}, s{sT3}, s{sRH}")
        A(f"s_lshl_b32 s{sT3}, s{sT3}, 12")
        for g in range(4):
            A(f"buffer_store_dwordx4 {v(KV+4*g,4)}, v{vE+7}, {s(SRD_KVP,4)}, s{sT3} offen offset:{1024*g}{sc}")
        if kv_hook:
            kv_hook(A)

    for t, (k, i) in enumerate(tiles):
        if k != "F":
            continue
        for lt in range(2):
            A(f"s_add_u32 s{sT2}, s{sT1}, {lt*144*1024 + i*1024}")
            epi_F(A, t, lt, sT2, sc)
            if pending_kv:
                kv_store()
                pending_kv = False
    if "Q" in kinds:
        A(f"v_mov_b32 v{vE}, {LOG2E}")
        for lt in range(2):
            ra, rb = vE + 8 + 4 * lt, vE + 10 + 4 * lt
            A(f"v_mul_f32 v{ra}, v{vE}, v{vE+4+lt}")
            A(f"v_mov_b32 v{ra+1}, v{ra}")
            A(f"v_mov_b32 v{rb}, v{vE+4+lt}")
            A(f"v_mov_b32 v{rb+1}, v{vE+4+lt}")
        A(f"v_cmp_gt_u32 {s(sLO,2)}, 32, v{vLane}")
        A(f"s_lshl_b32 s{sT3}, s{sHQ}, 11")
        A(f"s_add_u32 s{sT3}, s{sT3}, s{sT0}")
        for t, (k, q) in enumerate(tiles):
            if k != "Q":
                continue
            for lt in range(2):
                ra, rb = vE + 8 + 4 * lt, vE + 10 + 4 * lt
                q0 = acc(t, lt)
                for j in range(0, 16, 2):
                    phi_pair(A, q0 + j, ra, rb, vE + 32, q0 + j // 2)
                A(f"v_cndmask_b32 v{q0+6}, 0, v{q0+6}, {s(sLO,2)}")
                A(f"v_cndmask_b32 v{q0+7}, 0, v{q0+7}, {s(sLO,2)}")
                for u in range(2):
                    A(f"s_add_u32 s{sT2}, s{sT3}, {lt*144*1024 + (112+2*q+u)*1024}")
                    A(f"buffer_store_dwordx4 {v(q0+4*u,4)}, v{vE+7}, {s(SRD_ACT,4)}, s{sT2} offen{sc}")
```

```python
import sys, argparse
sys.path.insert(0, "gen")
from common import *
import p1, p2, p2f

PROF_OFF = 0x4000000
DBG = None
class Stamp:
    def __init__(self, enable):
        self.enable = enable
    def __call__(self, A, idx):
        if not self.enable:
            return
        if DBG is not None and idx == 9:
            return
        if DBG is not None and idx == 0:
            self.real(A, 9)
        A("s_memtime s[96:97]")
        A("s_waitcnt lgkmcnt(0)")
        A(f"s_mov_b32 s{84+idx}, s96")
    def real(self, A, idx):
        if not self.enable:
            return
        A("s_memrealtime s[96:97]")
        A("s_waitcnt lgkmcnt(0)")
        A(f"s_mov_b32 s{84+idx}, s96")
    def flush(self, A, n, sws, kidx=0):
        if not self.enable:
            return
        if DBG is not None:
            wg, wv = DBG
            skip = A.new_label("nodbg")
            A("s_memrealtime s[96:97]")
            A("s_waitcnt lgkmcnt(0)")
            A("s_sub_u32 s93, s96, s93")
            A("s_load_dwordx2 s[16:17], s[0:1], 64")
            A(f"s_cmp_lg_u32 s2, {wg}")
            A(f"s_cbranch_scc1 {skip}")
            A(f"s_cmp_lg_u32 s{p1.sW}, {wv}")
            A(f"s_cbranch_scc1 {skip}")
            A("s_waitcnt lgkmcnt(0)")
            A("s_and_b32 s17, s17, 0xffff")
            A("s_mov_b32 s18, 256")
            A("s_mov_b32 s19, 0x20000")
            A("v_mov_b32 v2, 0")
            for i in range(n):
                if i not in (0, 9):
                    A(f"s_sub_u32 s{84+i}, s{84+i}, s84")
            for i in range(1, n):
                A(f"v_mov_b32 v3, s{84+i}")
                A(f"buffer_store_dword v3, v2, s[16:19], 0 offen offset:{4*i}")
            A("s_waitcnt vmcnt(0)")
            A.label(skip)
            A("s_waitcnt lgkmcnt(0)")
            return
        srd(A, 16, sws, 0x100000, PROF_OFF + kidx * 0x40000)
        A("v_lshrrev_b32 v2, 6, v0")
        A("v_lshlrev_b32 v2, 6, v2")
        A("s_lshl_b32 s96, s2, 8")
        A("v_add_u32 v2, s96, v2")
        for i in range(n):
            A(f"v_mov_b32 v3, s{84+i}")
            A(f"buffer_store_dword v3, v2, s[16:19], 0 offen offset:{4*i}")
        A("s_memrealtime s[96:97]")
        A("s_waitcnt lgkmcnt(0)")
        A("v_mov_b32 v3, s96")
        A(f"buffer_store_dword v3, v2, s[16:19], 0 offen offset:52")
        A("s_waitcnt vmcnt(0)")

def k1(A, kern, stamp_en):
    A(khead(kern))
    ex = "L_exit_" + kern
    stamp = Stamp(stamp_en)
    p1.prologue_common(A, ex, stamp)
    labs = {vv: A.new_label("var" + vv) for vv in ("A0", "A1", "B0", "B1")}
    lb = A.new_label("typeB")
    A(f"s_cmp_ge_u32 s{p1.sC}, 12")
    A(f"s_cbranch_scc1 {lb}")
    A(f"s_cmp_eq_u32 s{p1.sCH}, 1")
    A(f"s_cbranch_scc1 {labs['A1']}")
    A(f"s_branch {labs['A0']}")
    A.label(lb)
    A(f"s_cmp_eq_u32 s{p1.sCH}, 1")
    A(f"s_cbranch_scc1 {labs['B1']}")
    A(f"s_branch {labs['B0']}")
    for vv in ("A0", "A1", "B0", "B1"):
        A.label(labs[vv])
        p1.prologue_var(A, vv, stamp)
        p1.loop(A, vv, stamp)
        stamp(A, 2)
        p1.epi_stats(A, vv)
        stamp(A, 3)
        p1.epilogue(A, vv)
        if not p1.OPT["probe"]: stamp(A, 4)
        A("s_waitcnt vmcnt(0)")
        if not p1.OPT["probe"]: stamp(A, 5)
        stamp.real(A, 7)
        stamp.flush(A, 12, p1.sWS)
        A("s_endpgm")
    A.label(ex)
    A("s_endpgm")

def kP(A, kern, stamp_en):
    p1.FUSED = True
    A(khead(kern))
    ex = "L_exit_" + kern
    st = Stamp(stamp_en)
    class S2:
        def __call__(self, A, idx):
            if idx in (0, 1): st(A, idx)
        def real(self, A, idx): pass
    p1.prologue_common(A, ex, S2())
    labs = {vv: A.new_label("var" + vv) for vv in ("A0", "A1", "B0", "B1")}
    lb = A.new_label("typeB")
    lph2 = A.new_label("phase2")
    A(f"s_cmp_ge_u32 s{p1.sC}, 12")
    A(f"s_cbranch_scc1 {lb}")
    A(f"s_cmp_eq_u32 s{p1.sCH}, 1")
    A(f"s_cbranch_scc1 {labs['A1']}")
    A(f"s_branch {labs['A0']}")
    A.label(lb)
    A(f"s_cmp_eq_u32 s{p1.sCH}, 1")
    A(f"s_cbranch_scc1 {labs['B1']}")
    A(f"s_branch {labs['B0']}")
    for vv in ("A0", "A1", "B0", "B1"):
        A.label(labs[vv])
        p1.prologue_var(A, vv, S2())
        p1.loop(A, vv, S2())
        st(A, 2)
        A(f"v_readfirstlane_b32 s{p1.sTag}, v{p1.vEpoch}")
        p2f.wave_consts(A)
        A(f"s_mul_i32 s{p1.sTag}, s{p1.sTag}, 0x9e3779b1")
        A(f"s_add_u32 s{p1.sTag}, s{p1.sTag}, 0x7f4a7c15")
        for j in range(21, 36):
            A(p2f.w2_dma_unit(0, j, vreg=p1.vW2pat, tmp=p1.sTmpW2))
        p1.epi_stats(A, vv)
        st(A, 3)
        p1.epilogue(A, vv, sc=" sc1")
        st(A, 4)
        srd(A, p1.SRD_FLG, p1.sWS, p1.FLG_BYTES, p1.FLG_OFF)
        A(f"s_lshl_b32 s48, s{p1.sR}, 1")
        A(f"s_add_u32 s48, s48, s{p1.sRH}")
        A(f"s_lshl_b32 s48, s48, 7")
        A(f"s_lshl_b32 s49, s{p1.sC}, 3")
        A(f"s_add_u32 s48, s48, s49")
        A(f"s_add_u32 s48, s48, {4*int(vv[1])}")
        A(f"v_mov_b32 v2, s48")
        A(f"v_mov_b32 v3, s{p1.sTag}")
        A("s_waitcnt vmcnt(0)")
        A(f"buffer_store_dword v3, v2, {s(p1.SRD_FLG,4)}, 0 offen sc1")
        st(A, 5)
        if vv != "B1":
            A(f"s_branch {lph2}")
    A.label(lph2)
    lred = A.new_label("reducer")
    lend = A.new_label("end")
    A(f"s_cmp_eq_u32 s{p1.sNT}, 7")
    A(f"s_cbranch_scc1 {lred}")
    p2f.phase2(A, " sc1", st, ex)
    A(f"s_branch {lend}")
    A.label(lred)
    p2f.reducer(A, " sc1", st)
    A.label(lend)
    st(A, 11)
    st.flush(A, 12, p1.sWS)
    A.label(ex)
    A("s_endpgm")
    A.label("L_codeend")
    A("s_endpgm")


def k2(A, kern, stamp_en):
    A(khead(kern))
    ex = "L_exit_" + kern
    A("s_cmp_ge_u32 s2, 16")
    A(f"s_cbranch_scc1 {ex}")
    A("s_load_dwordx2 s[12:13], s[0:1], 72")
    A("s_waitcnt lgkmcnt(0)")
    p2.kv_reduce(A, 2, 12, "")
    A("s_waitcnt vmcnt(0)")
    A.label(ex)
    A("s_endpgm")

def k3(A, kern, stamp_en):
    A(khead(kern))
    ex = "L_exit_" + kern
    stamp = Stamp(stamp_en)
    A("s_cmp_ge_u32 s2, 224")
    A(f"s_cbranch_scc1 {ex}")
    A("s_load_dwordx2 s[4:5], s[0:1], 0")
    A("s_load_dwordx2 s[6:7], s[0:1], 16")
    A("s_load_dwordx2 s[8:9], s[0:1], 48")
    A("s_load_dwordx2 s[10:11], s[0:1], 56")
    A("s_load_dwordx2 s[12:13], s[0:1], 72")
    stamp(A, 0)
    stamp.real(A, 6)
    A(f"v_and_b32 v{p2.vLane}, 63, v0")
    A("v_lshrrev_b32 v2, 6, v0")
    p2.setup_ids(A)
    A(f"v_readfirstlane_b32 s{p2.sW2}, v2")
    A("s_waitcnt lgkmcnt(0)")
    p2.setup(A)
    p2.w2_dma(A, 0)
    A("s_waitcnt vmcnt(0)")
    stamp(A, 1)
    for kk in range(18):
        A.ext(p2.w2_read(kk, p2.aW2 + 8 * kk))
    A("s_waitcnt lgkmcnt(0)")
    p2.w2_dma(A, 1)
    issued, nxt = p2.main_body(A, "")
    stamp(A, 2)
    p2.attention_and_finish(A, "", issued, nxt, None, stamp)
    A("s_waitcnt vmcnt(0)")
    stamp(A, 4)
    stamp(A, 5)
    stamp.real(A, 7)
    stamp.flush(A, 12, 12, 1)
    A.label(ex)
    A("s_endpgm")

def main():
    ap = argparse.ArgumentParser()
    ap.add_argument("--out", default="cdna_kernels/" + NAME + ".s")
    ap.add_argument("--variant", default="k1")
    ap.add_argument("--prof", action="store_true")
    ap.add_argument("--opt", default="")
    ap.add_argument("--pre2", type=int, default=18)
    ap.add_argument("--lp1", default="")
    ap.add_argument("--lp2", default="")
    ap.add_argument("--dma", default="")
    ap.add_argument("--dbg", default="")
    args = ap.parse_args()
    if args.dbg:
        global DBG
        DBG = tuple(int(z) for z in args.dbg.split(","))
        args.prof = True
    for o in args.opt.split(","):
        if o: p1.OPT[o] = True
    if args.lp1: p1.OPTS["lp1"] = [int(c) for c in args.lp1]
    if args.lp2: p1.OPTS["lp2"] = [int(c) for c in args.lp2]
    if args.dma:
        a_, b_, c_, d_ = args.dma.split(",")
        h = lambda z: [int(c, 16) for c in z]
        p1.DMA1[0], p1.DMA2[0], p1.DMA1[1], p1.DMA2[1] = h(a_), h(b_), h(c_), h(d_)
    A = Asm()
    kerns = []
    hdr = []
    if args.variant == "k1":
        kn = NAME + "_kernel"
        hdr.append(f"; @launch kernel={kn} grid=(256,1,1) block=(256,1,1) lds=163840")
        A('.amdgcn_target "amdgcn-amd-amdhsa--gfx950"')
        A(".text")
        k1(A, kn, args.prof)
        kerns.append(kn)
    if args.variant == "P":
        kn = NAME + "_kernel"
        hdr.append(f"; @launch kernel={kn} grid=(256,1,1) block=(256,1,1) lds=163840")
        A('.amdgcn_target "amdgcn-amd-amdhsa--gfx950"')
        A(".text")
        p2f.OPT["pre2"] = args.pre2
        kP(A, kn, args.prof)
        kerns.append(kn)
    if args.variant == "s3":
        kn = NAME + "_kernel"
        hdr.append(f"; @launch kernel={kn} grid=(256,1,1) block=(256,1,1) lds=163840")
        hdr.append(f"; @launch kernel=kvred_kernel grid=(16,1,1) block=(256,1,1) lds=0")
        hdr.append(f"; @launch kernel=ph2_kernel grid=(224,1,1) block=(256,1,1) lds=163840")
        A('.amdgcn_target "amdgcn-amd-amdhsa--gfx950"')
        A(".text")
        k1(A, kn, args.prof)
        k2(A, "kvred_kernel", False)
        k3(A, "ph2_kernel", args.prof)
        kerns += [kn, "kvred_kernel", "ph2_kernel"]
    txt = "\n".join(hdr) + "\n" + A.text() + '.section .rodata,"a"\n.p2align 6\n' + "".join(desc(k) for k in kerns)
    open(args.out, "w").write(txt)
    print("wrote", args.out, len(txt), "bytes")
main()
```

```python
from common import *

WSLOT = 20512
NPRE = 3
NSLOT = 4
XBASE = NSLOT * WSLOT
assert XBASE % 128 == 0
XSLOT = 16384
SCR = XBASE + 3 * XSLOT
RSTD = SCR + 512
CSX = SCR + 1024
RPS = SCR + 3584
KOFF, VOFF, QOFF = 16416, 18464, 8224
UOFF = {"A": 8224, "B": 4128}

VAR = {
    "A0": [("F", 0), ("F", 1), ("F", 2), ("F", 3), ("F", 4)],
    "A1": [("F", 5), ("F", 6), ("F", 7), ("K", 0), ("V", 0)],
    "B0": [("F", 0), ("F", 1), ("Q", 0), ("Q", 1), ("Q", 2)],
    "B1": [("F", 2), ("F", 3), ("Q", 3), ("K", 0), ("V", 0)],
}

ACT_OFF = 0
ACT_BYTES = 64 * 144 * 1024
KVP_OFF = 0x1000000
KVP_BYTES = 16 * 32 * 4096
KVF_OFF = 0x1400000
KVF_BYTES = 16 * 2 * 1024
FLG_OFF = 0x1500000
FLG_BYTES = 0x8000
F_A = 0x0000
F_F = 0x1000
F_Q = 0x1400
F_K = 0x1800
EPOCH = 0x2000
F_P = 0x3000
STAT = 0x4000
W2F_OFF = 0x1600000
W2F_BYTES = 1008 * 2048
NMAIN = 11

sEvt, sGid = 3, 83
sX, sQKV, sG, sU, sWS = 4, 6, 8, 10, 12
SRD_FLG = 8
sMT, sNT = 14, 15
SRD_GU, SRD_QKV, SRD_X, SRD_ACT, SRD_KVP = 16, 20, 24, 28, 32
sR, sC, sW, sRH, sCH = 36, 37, 38, 39, 40
sDlX, sOffGU, sOffQ, sOffX = 41, 42, 43, 44
sSlotW, sSlotX, sMask = 45, 46, 47
sT0, sT1, sT2, sT3 = 48, 49, 50, 51
sL28 = 52
sLO = 54
SRD_RP = 52
sMo = 56
sCnt, sD, sDX, sC4, sC6, sRot = 63, 64, 65, 66, 67, 68
sHKV, sTb, sHQ = 69, 70, 71
sWSL, sNEGW, sNEGX = 72, 73, 74
sTag = 75
SRD_W2 = 76
sW2cur, sW2lo, sW2hi, sW2o = 80, 81, 82, 83
sWOp, sOUTp = 98, 100

vTid, vLane = 0, 1
vDMA = 8
vL16 = 15
vF1, vF2, vN1, vN2, vX1, vX2 = 16, 17, 18, 19, 20, 21
vEpoch, vPollW = 22, 23
vW2a, vW2b, vPollS, vRSl = 24, 25, 26, 27
vST = 28
vXF = 32
vE = 48
vACC = 96
aW = 0
aCS = 40
aSEL = 60

OPT = {"norot": False, "cpf": False, "rot2": False, "rot3": False}


def w2reg(q):
    if q < 24:
        return lambda ns: a(64 + 8 * q + 4 * ns, 4)
    if q < 32:
        return lambda ns: a(8 * (q - 24) + 4 * ns, 4)
    return lambda ns: v(VW2X + 8 * (q - 32) + 4 * ns, 4)


VW2X = 224


def acc(t, lt):
    return vACC + 16 * (2 * t + lt)


def xf(b, lt):
    return vXF + 8 * b + 4 * lt


def wf(b, t):
    return aW + 20 * b + 4 * t


def tile_addr(var, t, typ):
    kind, i = VAR[var][t]
    F = vF1 if typ == 1 else vF2
    N = vN1 if typ == 1 else vN2
    if kind == "F":
        return F, 2048 * (i >> 1) + 32 * (i & 1)
    if kind == "Q":
        return N, QOFF + 2048 * i
    return N, (KOFF if kind == "K" else VOFF)


def swapped(var, t):
    return VAR[var][t][0] in "KV"


def uses_n(var):
    return any(k != "F" for k, _ in VAR[var])


def frag_reads(var, buf, typ):
    X = vX1 if typ == 1 else vX2
    R = []
    R.append(f"ds_read_b128 {v(xf(buf,0),4)}, v{X}")
    R.append(f"ds_read_b128 {v(xf(buf,1),4)}, v{X} offset:4096")
    for t in range(5):
        reg, imm = tile_addr(var, t, typ)
        R.append(f"ds_read_b64_tr_b16 {a(wf(buf,t),2)}, v{reg} offset:{imm}")
        R.append(f"ds_read_b64_tr_b16 {a(wf(buf,t)+2,2)}, v{reg} offset:{imm+256}")
    return R


def addr_updates(var, typ):
    F, N, X = (vF1, vN1, vX1) if typ == 1 else (vF2, vN2, vX2)
    U = [f"v_add_u32 v{F}, s{sD}, v{F}"]
    if uses_n(var):
        U.append(f"v_add_u32 v{N}, s{sD}, v{N}")
    U.append(f"v_xad_u32 v{X}, v{X}, 64, s{sDX}")
    return U


def mfmas(var, buf):
    M = []
    for t in range(5):
        for lt in range(2):
            A_ = a(wf(buf, t), 4)
            B_ = v(xf(buf, lt), 4)
            if swapped(var, t):
                A_, B_ = B_, A_
            D = v(acc(t, lt), 16)
            M.append(f"v_mfma_f32_32x32x16_bf16 {D}, {A_}, {B_}, {D}")
    return M


def mfma16(buf):
    return [f"v_mfma_f32_16x16x32_bf16 {a(aCS+4*t,4)}, {a(aSEL,4)}, {a(wf(buf,t),4)}, {a(aCS+4*t,4)}" for t in range(5)]


UNITS = {
    "A0": [("GU", 0, 0), ("GU", 0, 1), ("GU", 0, 2), ("GU", 0, 3), ("GU", 1, 0), ("GU", 1, 1), ("GU", 1, 2)],
    "A1": [("X", 0), ("X", 1), ("X", 2), ("X", 3), ("GU", 1, 3), ("KV", 0), ("KV", 1)],
    "B0": [("GU", 0, 0), ("GU", 0, 1), ("GU", 1, 0), ("GU", 1, 1), ("Q", 0), ("Q", 1), ("Q", 2)],
    "B1": [("X", 0), ("X", 1), ("X", 2), ("X", 3), ("Q", 3), ("KV", 0), ("KV", 1)],
}


def dma_unit(var, u):
    kind = UNITS[var][u][0]
    base = sSlotX if kind == "X" else sSlotW
    srd_, so = {"GU": (SRD_GU, sOffGU), "Q": (SRD_QKV, sOffQ), "KV": (SRD_QKV, sOffQ), "X": (SRD_X, sOffX)}[kind]
    m = f"s_add_u32 m0, s{base}, s{sMo+u}"
    l = f"buffer_load_dwordx4 v{vDMA+u}, {s(srd_,4)}, s{so} offen lds"
    return m, l


def adv_x():
    return [f"s_sub_u32 s{sDlX}, 128, s{sDlX}",
            f"s_add_u32 s{sOffX}, s{sOffX}, s{sDlX}\ns_cmp_eq_u32 s{sOffX}, 896\ns_cselect_b32 s{sOffX}, 0, s{sOffX}",
            f"s_add_u32 s{sSlotX}, s{sSlotX}, 8192\ns_cmp_eq_u32 s{sSlotX}, {XBASE+3*XSLOT}\ns_cselect_b32 s{sSlotX}, {XBASE}, s{sSlotX}"]


def adv(var):
    kinds = {u[0] for u in UNITS[var]}
    return (adv_x() if "X" in kinds else []) + adv_w(var)


def adv_w(var):
    kinds = {u[0] for u in UNITS[var]}
    L = []
    if "GU" in kinds:
        L.append(f"s_add_u32 s{sOffGU}, s{sOffGU}, {32*3584}\ns_cmp_eq_u32 s{sOffGU}, {448*3584}\ns_cselect_b32 s{sOffGU}, 0, s{sOffGU}")
    if "Q" in kinds or "KV" in kinds:
        L.append(f"s_add_u32 s{sOffQ}, s{sOffQ}, {32*2688}\ns_cmp_eq_u32 s{sOffQ}, {448*2688}\ns_cselect_b32 s{sOffQ}, 0, s{sOffQ}")
    L.append(f"s_add_u32 s{sSlotW}, s{sSlotW}, {WSLOT}\ns_cmp_eq_u32 s{sSlotW}, {NSLOT*WSLOT}\ns_cselect_b32 s{sSlotW}, 0, s{sSlotW}")
    return L


def prologue_common(A, exit_label, stamp):
    A(f"s_cmp_ge_u32 s2, 256")
    A(f"s_cbranch_scc1 {exit_label}")
    A(f"s_load_dwordx4 {s(sX,4)}, s[0:1], 0")
    A(f"s_load_dwordx4 {s(sG,4)}, s[0:1], 32")
    A(f"s_load_dwordx2 {s(sWS,2)}, s[0:1], 72")
    A(f"s_load_dwordx4 {s(SRD_W2,4)}, s[0:1], 48")
    A(f"s_load_dwordx2 {s(sWOp,2)}, s[0:1], 16")
    A(f"v_and_b32 v{vLane}, 63, v{vTid}")
    if OPT["cpf"]:
        lpc = A.new_label("pc")
        A(f"s_getpc_b64 s[90:91]")
        A.label(lpc)
        A(f"s_bfe_u32 s92, s2, 0x10003")
        A(f"s_lshl_b32 s92, s92, 15")
        A(f"v_lshlrev_b32 v2, 7, v{vTid}")
        A(f"v_add_u32 v2, s92, v2")
        A(f"v_min_u32 v2, L_codeend-{lpc}-4, v2")
        A(f"global_load_dword v47, v2, s[90:91]")
    stamp(A, 0)
    A(f"v_lshrrev_b32 v2, 6, v{vTid}")
    A(f"s_and_b32 s{sT0}, s2, 1")
    A(f"s_lshl_b32 s{sT0}, s{sT0}, 3")
    A(f"s_bfe_u32 s{sT1}, s2, 0x30003")
    A(f"s_add_u32 s{sR}, s{sT0}, s{sT1}")
    A(f"v_readfirstlane_b32 s{sW}, v2")
    A(f"s_bfe_u32 s{sT0}, s2, 0x20001")
    A(f"s_lshl_b32 s{sT0}, s{sT0}, 2")
    A(f"s_lshr_b32 s{sT2}, s2, 6")
    A(f"s_add_u32 s{sC}, s{sT0}, s{sT2}")
    A(f"s_lshr_b32 s{sRH}, s{sW}, 1")
    A(f"s_and_b32 s{sCH}, s{sW}, 1")
    A(f"s_mov_b32 s{sMask}, 0xffff0000")
    if OPT["norot"]:
        A(f"s_mov_b32 s{sRot}, 0")
    elif OPT["rot2"]:
        A(f"s_xor_b32 s{sRot}, s{sT1}, s{sT2}")
        A(f"s_and_b32 s{sRot}, s{sRot}, 1")
        A(f"s_mul_i32 s{sRot}, s{sRot}, 3")
    elif OPT["rot3"]:
        A(f"s_add_u32 s{sRot}, s{sT1}, s{sT2}")
        A(f"s_and_b32 s{sRot}, s{sRot}, 3")
        A(f"s_lshl_b32 s{sRot}, s{sRot}, 1")
    else:
        A(f"s_lshl_b32 s{sT2}, s{sT2}, 1")
        A(f"s_add_u32 s{sRot}, s{sT1}, s{sT2}")
        A(f"s_cmp_ge_u32 s{sRot}, 7")
        A(f"s_cselect_b32 s{sT0}, 7, 0")
        A(f"s_sub_u32 s{sRot}, s{sRot}, s{sT0}")
    A(f"v_lshrrev_b32 v2, 2, v{vLane}")
    A(f"v_and_b32 v3, 3, v{vLane}")
    A(f"v_lshlrev_b32 v3, 4, v3")
    A(f"v_mul_u32_u24 v4, 3584, v2")
    A(f"v_add_u32 v4, v4, v3")
    A(f"v_mul_u32_u24 v5, 2688, v2")
    A(f"v_add_u32 v5, v5, v3")
    A(f"v_lshlrev_b32 v{vL16}, 4, v{vLane}")


def ids2(A):
    A(f"s_and_b32 s{sT0}, s2, 7")
    A(f"s_lshl_b32 s{sT0}, s{sT0}, 2")
    A(f"s_bfe_u32 s{sT1}, s2, 0x20003")
    A(f"s_add_u32 s{sMT}, s{sT0}, s{sT1}")
    A(f"s_lshr_b32 s{sNT}, s2, 5")


vRP = vE
vSD = vE + 8
vRPv = vE + 16
vRPr = vE + 17
vSTv = vE + 19
vQ = vE + 20


def task_issue(A):
    A(f"s_mul_i32 s{sT0}, s{sGid}, {2*896}")
    A(f"buffer_load_dwordx4 {v(vSD,4)}, v{vSTv}, {s(SRD_X,4)}, s{sT0} offen")
    A(f"buffer_load_dwordx4 {v(vSD+4,4)}, v{vSTv}, {s(SRD_X,4)}, s{sT0} offen offset:896")
    A(f"s_lshl_b32 m0, s{sW}, 11")
    A(f"s_add_u32 m0, m0, {RPS}")
    A("s_nop 0")
    A(f"buffer_load_dwordx4 v{vRPv}, {s(SRD_RP,4)}, s{sD} offen lds")
    A(f"s_add_u32 m0, m0, 1024")
    A(f"s_add_u32 s{sD}, s{sD}, 7168")
    A(f"buffer_load_dwordx4 v{vRPv}, {s(SRD_RP,4)}, s{sD} offen lds")


def task_setup_pre(A):
    A(f"s_lshl_b32 s{sGid}, s{sR}, 6")
    A(f"s_lshl_b32 s{sT0}, s{sC}, 2")
    A(f"s_add_u32 s{sGid}, s{sGid}, s{sT0}")
    A(f"s_add_u32 s{sGid}, s{sGid}, s{sW}")
    A(f"s_mul_i32 s{sT0}, s{sGid}, 7282")
    A(f"s_lshr_b32 s{sT0}, s{sT0}, 20")
    A(f"s_mul_i32 s{sT1}, s{sT0}, 144")
    A(f"s_sub_u32 s{sT1}, s{sGid}, s{sT1}")
    A(f"s_sub_u32 s{sT2}, s{sT1}, 112")
    A(f"s_lshr_b32 s{sT3}, s{sT2}, 1")
    A(f"s_mul_i32 s{sT3}, s{sT3}, 28")
    A(f"s_and_b32 s{sT2}, s{sT2}, 1")
    A(f"s_lshl_b32 s{sT2}, s{sT2}, 4")
    A(f"s_add_u32 s{sT3}, s{sT3}, s{sT2}")
    A(f"s_lshl_b32 s{sT2}, s{sT1}, 4")
    A(f"s_cmp_lt_u32 s{sT1}, 112")
    A(f"s_cselect_b32 s{sD}, s{sT2}, s{sT3}")
    A(f"s_cselect_b32 s{sDX}, 1, 0")
    A(f"s_mul_i32 s{sD}, s{sD}, 896")
    A(f"v_lshrrev_b32 v{vQ}, 3, v{vLane}")
    A(f"v_mul_u32_u24 v{vQ+1}, 896, v{vQ}")
    A(f"v_bfe_u32 v{vQ+2}, v{vLane}, 4, 1")
    A(f"v_lshlrev_b32 v{vQ+2}, 2, v{vQ+2}")
    A(f"v_and_b32 v{vQ+3}, 7, v{vLane}")
    A(f"v_xor_b32 v{vQ+3}, v{vQ+3}, v{vQ+2}")
    A(f"v_lshlrev_b32 v{vQ+3}, 4, v{vQ+3}")
    A(f"s_lshl_b32 s{sT0}, s{sT0}, 7")
    A(f"v_add3_u32 v{vRPv}, v{vQ+1}, v{vQ+3}, s{sT0}")
    A(f"v_mov_b32 v{vQ}, 0x40000000")
    A(f"v_cmp_gt_u32 vcc, 56, v{vLane}")
    A("s_nop 1")
    A(f"v_cndmask_b32 v{vSTv}, v{vQ}, v{vL16}, vcc")


def task_setup_post(A):
    t = vQ
    A(f"v_lshrrev_b32 v{t}, 5, v{vLane}")
    A(f"v_lshlrev_b32 v{t}, 2, v{t}")
    A(f"v_bfe_u32 v{t+1}, v{vLane}, 2, 2")
    A(f"v_add_u32 v{t}, v{t}, v{t+1}")
    A(f"v_lshlrev_b32 v{t}, 7, v{t}")
    A(f"v_bfe_u32 v{t+1}, v{vLane}, 4, 1")
    A(f"v_lshlrev_b32 v{t+1}, 1, v{t+1}")
    A(f"v_bfe_u32 v{t+2}, v{vLane}, 1, 1")
    A(f"v_add_u32 v{t+1}, v{t+1}, v{t+2}")
    A(f"v_bfe_u32 v{t+2}, v{vLane}, 3, 1")
    A(f"v_lshlrev_b32 v{t+2}, 2, v{t+2}")
    A(f"v_xor_b32 v{t+1}, v{t+1}, v{t+2}")
    A(f"v_lshl_add_u32 v{t}, v{t+1}, 4, v{t}")
    A(f"v_and_b32 v{t+1}, 1, v{vLane}")
    A(f"v_lshl_add_u32 v{t}, v{t+1}, 3, v{t}")
    A(f"s_lshl_b32 s{sT0}, s{sW}, 11")
    A(f"s_add_u32 s{sT0}, s{sT0}, {RPS}")
    A(f"v_add_u32 v{vRPr}, s{sT0}, v{t}")
    A(f"v_xor_b32 v{vRPr+1}, 64, v{vRPr}")


def bf16_round(A, dst, src):
    A(f"v_cvt_pk_bf16_f32 v{dst}, v{src}, v{src}")
    A(f"v_and_b32 v{dst}, s{sMask}, v{dst}")


def task_process(A, younger):
    assert RPS % 128 == 0
    A(f"s_waitcnt vmcnt({younger})")
    for ns in range(2):
        for part in range(2):
            A(f"ds_read_b64_tr_b16 {v(vRP+4*ns+2*part,2)}, v{vRPr+ns} offset:{1024*part}")
    S, Q_ = [vQ, vQ + 2], [vQ + 1, vQ + 3]
    S2, Q2 = [vQ + 4, vQ + 6], [vQ + 5, vQ + 7]
    lo, hi = vQ + 8, vQ + 9
    lo2, hi2 = vQ + 10, vQ + 11
    for row in range(2):
        for i in range(4):
            l, h = (lo, hi) if i & 1 == 0 else (lo2, hi2)
            r = vSD + 4 * row + i
            A(f"v_lshlrev_b32 v{l}, 16, v{r}")
            A(f"v_and_b32 v{h}, s{sMask}, v{r}")
            if i == 0:
                A(f"v_mov_b32 v{S[row]}, v{l}")
                A(f"v_mov_b32 v{S2[row]}, v{h}")
                A(f"v_mul_f32 v{Q_[row]}, v{l}, v{l}")
                A(f"v_mul_f32 v{Q2[row]}, v{h}, v{h}")
            else:
                A(f"v_add_f32 v{S[row]}, v{S[row]}, v{l}")
                A(f"v_add_f32 v{S2[row]}, v{S2[row]}, v{h}")
                A(f"v_fmac_f32 v{Q_[row]}, v{l}, v{l}")
                A(f"v_fmac_f32 v{Q2[row]}, v{h}, v{h}")
    for row in range(2):
        A(f"v_add_f32 v{S[row]}, v{S[row]}, v{S2[row]}")
        A(f"v_add_f32 v{Q_[row]}, v{Q_[row]}, v{Q2[row]}")
    A("s_waitcnt lgkmcnt(0)")
    A(f"s_lshl_b32 s{sT0}, s{sGid}, 11")
    for ns in range(2):
        A(f"buffer_store_dwordx4 {v(vRP+4*ns,4)}, v{vL16}, {s(SRD_W2,4)}, s{sT0} offen offset:{1024*ns} sc1")
    A(f"v_permlane32_swap_b32 v{S[0]}, v{S[1]}")
    A(f"v_permlane32_swap_b32 v{Q_[0]}, v{Q_[1]}")
    A("s_nop 1")
    A(f"v_add_f32 v{S[0]}, v{S[0]}, v{S[1]}")
    A(f"v_add_f32 v{Q_[0]}, v{Q_[0]}, v{Q_[1]}")
    A("s_nop 1")
    A(f"v_permlane16_swap_b32 v{S[0]}, v{Q_[0]}")
    A("s_nop 1")
    T, U = S[0], Q_[0]
    A(f"v_add_f32 v{T}, v{T}, v{U}")
    for dpp in ("quad_perm:[1,0,3,2]", "quad_perm:[2,3,0,1]", "row_half_mirror", "row_mirror"):
        A("s_nop 1")
        A(f"v_add_f32_dpp v{T}, v{T}, v{T} {dpp} row_mask:0xf bank_mask:0xf")
    A(f"v_mov_b32 v{U}, v{T}")
    A("s_nop 1")
    A(f"v_permlane16_swap_b32 v{T}, v{U}")
    A("s_nop 1")
    t0, t1 = vQ + 4, vQ + 5
    inv = "0x3b124925"
    A(f"v_mul_f32 v{t0}, {inv}, v{T}")
    A(f"v_mul_f32 v{t1}, {inv}, v{U}")
    A(f"v_fma_f32 v{t1}, -v{t0}, v{t0}, v{t1}")
    A(f"v_max_f32 v{t1}, 0, v{t1}")
    bf16_round(A, t1, t1)
    A(f"v_add_f32 v{t1}, 0x3727c5ac, v{t1}")
    bf16_round(A, t1, t1)
    A(f"v_sqrt_f32 v{t1}, v{t1}")
    A(f"v_xor_b32 v{t0}, 0x80000000, v{t0}")
    bf16_round(A, t1, t1)
    A(f"v_rcp_f32 v{t1}, v{t1}")
    A(f"v_cvt_pk_bf16_f32 v{t0}, v{t0}, v{t0}")
    A(f"v_lshrrev_b32 v{vQ+6}, 5, v{vLane}")
    A(f"v_lshlrev_b32 v{vQ+6}, 3, v{vQ+6}")
    A(f"s_lshl_b32 s{sT0}, s{sGid}, 4")
    A(f"s_add_u32 s{sT0}, s{sT0}, {STAT}")
    A(f"s_mov_b32 exec_lo, 1")
    A(f"s_mov_b32 exec_hi, 1")
    A(f"buffer_store_dwordx2 {v(t0,2)}, v{vQ+6}, {s(SRD_FLG,4)}, s{sT0} offen sc1")
    A(f"s_mov_b64 exec, -1")


def prologue_var(A, var, stamp):
    typ, ch = var[0], int(var[1])
    if typ == "A":
        A(f"s_lshl_b32 s{sTb}, s{sC}, 3")
        A(f"s_lshl_b32 s{sT2}, s{sC}, 8")
        A(f"s_lshl_b32 s{sT0}, s{sC}, 1")
        A(f"s_sub_u32 s{sT0}, s{sT0}, 7")
        A(f"s_cmp_lt_u32 s{sC}, 8")
        A(f"s_cselect_b32 s{sHKV}, s{sC}, s{sT0}")
        A(f"s_mov_b32 s{sHQ}, 0")
    else:
        A(f"s_sub_u32 s{sT0}, s{sC}, 12")
        A(f"s_lshl_b32 s{sTb}, s{sT0}, 2")
        A(f"s_add_u32 s{sTb}, s{sTb}, 96")
        A(f"s_lshl_b32 s{sT2}, s{sT0}, 7")
        A(f"s_add_u32 s{sT2}, s{sT2}, 3072")
        A(f"s_lshl_b32 s{sHKV}, s{sT0}, 1")
        A(f"s_add_u32 s{sHKV}, s{sHKV}, 8")
        A(f"s_lshl_b32 s{sHQ}, s{sT0}, 2")
    units = UNITS[var]
    kinds = {u[0] for u in units}
    if "X" in kinds:
        A(f"v_lshrrev_b32 v6, 3, v{vLane}")
        A(f"v_mul_u32_u24 v6, 896, v6")
        A(f"s_mul_i32 s{sT0}, s{sR}, {128*896}")
        A(f"s_mul_i32 s{sT1}, s{sRH}, {32*896}")
        A(f"s_add_u32 s{sT0}, s{sT0}, s{sT1}")
        A(f"v_add_u32 v6, s{sT0}, v6")
        A(f"v_lshrrev_b32 v7, 4, v{vLane}")
        A(f"v_xor_b32 v7, v7, v{vLane}")
        A(f"v_and_b32 v7, 7, v7")
        A(f"v_lshlrev_b32 v7, 4, v7")
    for u, un in enumerate(units):
        d = vDMA + u
        if un[0] == "GU":
            _, b, p = un
            A(f"s_add_u32 s{sT0}, s{sT2}, {64*p + 16*3584*b}")
            A(f"v_add_u32 v{d}, s{sT0}, v4")
            A(f"s_mul_i32 s{sMo+u}, s{sRH}, {UOFF[typ]}")
            A(f"s_add_u32 s{sMo+u}, s{sMo+u}, {2048*p + 1024*b}")
        elif un[0] == "Q":
            q = un[1]
            A(f"s_add_u32 s{sT0}, s{sHQ}, {q}")
            A(f"s_mul_i32 s{sT0}, s{sT0}, 56")
            A(f"s_mul_i32 s{sT1}, s{sRH}, {16*2688}")
            A(f"s_add_u32 s{sT0}, s{sT0}, s{sT1}")
            A(f"v_add_u32 v{d}, s{sT0}, v5")
            A(f"s_lshl_b32 s{sMo+u}, s{sRH}, 10")
            A(f"s_add_u32 s{sMo+u}, s{sMo+u}, {QOFF + 2048*q}")
        elif un[0] == "KV":
            b = un[1]
            A(f"s_mul_i32 s{sT0}, s{sHKV}, 56")
            A(f"s_mul_i32 s{sT1}, s{sRH}, 896")
            A(f"s_add_u32 s{sT0}, s{sT0}, s{sT1}")
            A(f"s_add_u32 s{sT0}, s{sT0}, {896 + 16*2688*b}")
            A(f"v_add_u32 v{d}, s{sT0}, v5")
            A(f"s_lshl_b32 s{sMo+u}, s{sRH}, 11")
            A(f"s_add_u32 s{sMo+u}, s{sMo+u}, {KOFF + 1024*b}")
        else:
            uu = un[1]
            if uu & 1:
                A(f"v_xor_b32 v{d}, 64, v7")
            else:
                A(f"v_mov_b32 v{d}, v7")
            A(f"v_add_u32 v{d}, v{d}, v6")
            if uu:
                A(f"v_add_u32 v{d}, {uu*8*896}, v{d}")
            A(f"s_lshl_b32 s{sMo+u}, s{sRH}, 12")
            A(f"s_add_u32 s{sMo+u}, s{sMo+u}, {1024*uu}")
    A(f"s_mov_b32 s{sSlotW}, 0")
    A(f"s_mov_b32 s{sSlotX}, {XBASE}")
    A(f"s_mul_i32 s{sOffGU}, s{sRot}, {64*3584}")
    A(f"s_mul_i32 s{sOffQ}, s{sRot}, {64*2688}")
    A(f"s_lshl_b32 s{sOffX}, s{sRot}, 7")
    A(f"s_mov_b32 s{sDlX}, {(128 - 64*896) & 0xffffffff}")
    task_setup_pre(A)
    A("s_waitcnt lgkmcnt(0)")
    srd(A, SRD_X, sX, 2048 * 896)
    srd(A, SRD_QKV, sQKV, 448 * 2688)
    A(f"s_cmp_eq_u32 s{sRH}, 1")
    A(f"s_cselect_b32 s{sG}, s{sU}, s{sG}")
    A(f"s_cselect_b32 s{sG+1}, s{sU+1}, s{sG+1}")
    srd(A, SRD_GU, sG, 448 * 3584)
    nv = 0
    if "X" in kinds:
        for u in range(4):
            m, l = dma_unit(var, u)
            A(m)
            A("s_nop 0")
            A(l)
            nv += 1
        for it in adv_x():
            A(it)
    zero = [f"v_mov_b32 v{vACC+i}, 0" for i in range(160)] + [f"v_accvgpr_write_b32 a{aCS+i}, 0" for i in range(20)]

    def group(st, fill):
        for u in range(7):
            m, l = dma_unit(var, u)
            A(m)
            A(zero.pop() if (fill and zero) else "s_nop 0")
            A(l)
            if fill:
                for _ in range(fill):
                    if zero:
                        A(zero.pop())
        if st < NPRE - 1 or ch == 0:
            for it in adv(var):
                A(it)
        else:
            for it in adv_x():
                A(it)
    group(0, 0)
    A(f"s_cmp_eq_u32 s{sDX}, 1")
    A(f"s_cselect_b32 s{SRD_RP}, s{SRD_W2}, s{sWOp}")
    A(f"s_cselect_b32 s{SRD_RP+1}, s{SRD_W2+1}, s{sWOp+1}")
    A(f"s_mov_b32 s{SRD_RP+2}, {448*896}")
    A(f"s_cselect_b32 s{SRD_RP+2}, {1792*896}, s{SRD_RP+2}")
    A(f"s_and_b32 s{SRD_RP+1}, s{SRD_RP+1}, 0xffff")
    A(f"s_mov_b32 s{SRD_RP+3}, 0x20000")
    task_issue(A)
    after_tasks = 0
    group(1, 3)
    after_tasks += 7
    stamp(A, 9)
    A(f"s_mov_b32 s{sOUTp}, s{SRD_W2+2}")
    A(f"s_mov_b32 s{sOUTp+1}, s{SRD_W2+3}")
    srd(A, SRD_W2, sWS, W2F_BYTES, W2F_OFF)
    srd(A, SRD_FLG, sWS, FLG_BYTES, FLG_OFF)
    group(2, 3)
    after_tasks += 7
    A(f"v_mov_b32 v2, {EPOCH}")
    A(f"buffer_load_dword v{vEpoch}, v2, {s(SRD_FLG,4)}, 0 offen sc1")
    after_tasks += 1
    srd(A, SRD_ACT, sWS, ACT_BYTES, ACT_OFF)
    srd(A, SRD_KVP, sWS, KVP_BYTES, KVP_OFF)
    ids2(A)
    task_setup_post(A)
    A(f"v_lshrrev_b32 v2, 5, v{vLane}")
    A(f"v_lshlrev_b32 v2, 3, v2")
    A(f"v_bfe_u32 v5, v{vLane}, 2, 2")
    A(f"v_add_u32 v2, v2, v5")
    A(f"v_bfe_u32 v3, v{vLane}, 4, 1")
    A(f"v_and_b32 v4, 3, v{vLane}")
    A(f"v_lshlrev_b32 v4, 3, v4")
    A(f"s_lshl_b32 s{sT0}, s{sRH}, 10")
    A(f"s_sub_u32 s{sT1}, 1024, s{sT0}")
    A(f"v_lshl_add_u32 v6, v2, 6, v4")
    A(f"v_mul_u32_u24 v7, {UOFF[typ]}, v3")
    A(f"v_add3_u32 v{vF1}, v6, v7, s{sT0}")
    A(f"v_add3_u32 v{vF2}, v6, v7, s{sT1}")
    A(f"v_lshlrev_b32 v7, 5, v3")
    A(f"v_add3_u32 v{vN1}, v6, v7, s{sT0}")
    A(f"v_add3_u32 v{vN2}, v6, v7, s{sT1}")
    A(f"v_and_b32 v6, 31, v{vLane}")
    A(f"v_lshlrev_b32 v6, 7, v6")
    A(f"s_lshl_b32 s{sT0}, s{sRH}, 13")
    A(f"s_add_u32 s{sT0}, s{sT0}, {XBASE}")
    A(f"v_lshrrev_b32 v7, 5, v{vLane}")
    A(f"v_bfe_u32 v5, v{vLane}, 1, 3")
    A(f"v_xor_b32 v7, v7, v5")
    A(f"s_lshl_b32 s{sT1}, s{sRH}, 1")
    A(f"v_xor_b32 v3, s{sT1}, v7")
    A(f"v_lshlrev_b32 v3, 4, v3")
    A(f"v_add3_u32 v{vX1}, v6, v3, s{sT0}")
    A(f"v_xor_b32 v3, 32, v3")
    A(f"v_add3_u32 v{vX2}, v6, v3, s{sT0}")
    A(f"v_lshrrev_b32 v2, 2, v{vLane}")
    A(f"v_lshrrev_b32 v3, 4, v{vLane}")
    A(f"v_xor_b32 v2, v2, v3")
    A(f"v_and_b32 v2, 1, v2")
    A(f"v_cmp_eq_u32 vcc, 0, v2")
    A(f"v_mov_b32 v3, 0x3f803f80")
    A(f"v_mov_b32 v4, 0")
    A(f"v_cndmask_b32 v3, v4, v3, vcc")
    for i in range(4):
        A(f"v_accvgpr_write_b32 a{aSEL+i}, v3")
    for z in zero:
        A(z)
    A(f"s_lshr_b32 s{sT0}, s{sW}, 1")
    A(f"s_lshl_b32 s{sT0}, s{sT0}, 10")
    A(f"s_sub_u32 s{sT1}, 1024, s{sT0}")
    A(f"v_add_u32 v{vW2a}, s{sT0}, v{vL16}")
    A(f"v_add_u32 v{vW2b}, s{sT1}, v{vL16}")
    A(f"s_mov_b32 s{sWSL}, {WSLOT}")
    A(f"s_mov_b32 s{sNEGW}, {(-(NSLOT-1)*WSLOT) & 0xffffffff}")
    A(f"s_mov_b32 s{sNEGX}, {(-2*XSLOT) & 0xffffffff}")
    A(f"s_mov_b32 s{sD}, {WSLOT}")
    A(f"s_mov_b32 s{sDX}, 0")
    A(f"s_mov_b32 s{sC4}, 0")
    A(f"s_mov_b32 s{sC6}, 0")
    A(f"s_mov_b32 s{sCnt}, 0")
    A(f"s_mov_b32 s{sEvt}, 2")
    stamp(A, 8)
    task_process(A, after_tasks)
    return after_tasks + 3


def delta_calc():
    return [
        f"s_add_u32 s{sC4}, s{sC4}, 1",
        f"s_and_b32 s{sC4}, s{sC4}, {NSLOT-1}",
        f"s_cmp_eq_u32 s{sC4}, {NSLOT-1}\ns_cselect_b32 s{sD}, s{sNEGW}, s{sWSL}",
        f"s_add_u32 s{sC6}, s{sC6}, 1",
        f"s_cmp_eq_u32 s{sC6}, 6\ns_cselect_b32 s{sC6}, 0, s{sC6}",
        f"s_and_b32 s{sT3}, s{sC6}, 1",
        f"s_lshl_b32 s{sDX}, s{sT3}, 14",
        f"s_cmp_eq_u32 s{sC6}, 5\ns_cselect_b32 s{sDX}, s{sNEGX}, s{sDX}",
    ]


def nins(item):
    return len(item.split("\n")) if item else 0


def sched(M, caps, lds, ldsplan, dma, flow, pin=None, flow_end=None):
    n = len(M)
    slots = [[] for _ in range(n)]
    k = 0
    for i, c in enumerate(ldsplan):
        for _ in range(c):
            if k < len(lds):
                slots[i].append(lds[k]); k += 1
    assert k == len(lds)
    for i, items in (pin or {}).items():
        slots[i] += items
    used = [sum(nins(f) for f in slots[i]) + (nins(dma[i][0]) + nins(dma[i][1]) if i in dma else 0) for i in range(n)]
    rem = [max(0, caps[i] - used[i]) for i in range(n)]
    if flow_end is not None:
        rem = [rem[i] if i < flow_end else 0 for i in range(n)]
    tot_rem = sum(rem)
    tot_flow = sum(nins(f) for f in flow)
    scale = min(1.0, tot_flow / max(1, tot_rem))
    cum_cap = 0.0
    placed = 0
    fi = 0
    for i in range(n):
        cum_cap += rem[i] * scale
        while fi < len(flow) and placed + nins(flow[fi]) / 2.0 <= cum_cap + 1e-9:
            slots[i].append(flow[fi]); placed += nins(flow[fi]); fi += 1
    while fi < len(flow):
        slots[(n if flow_end is None else flow_end) - 1].append(flow[fi]); fi += 1
    out = []
    for i in range(n):
        out.append(M[i])
        body = list(slots[i])
        if i in dma:
            m, l = dma[i]
            if not body and "m0" in m:
                body = ["s_nop 0"]
            body = [m] + body + [l]
        out += body
    return out


DMA1 = {0: [0, 3, 6], 1: [2, 5, 8]}
DMA2 = {0: [0, 3, 7, 11], 1: [1, 5, 9, 13]}
OPTS = {"lp1": [2, 2, 2, 2, 2, 2], "lp2": [2, 2, 1, 2, 2, 1, 2], "cap": 6}


def stage(A, var, dma_fn, vm_mid, last_items=(), tail=None, extra1=(), extra2=()):
    ch = int(var[1])
    n1 = len(DMA1[ch])
    cap = OPTS["cap"]
    last = (tail == 2)
    A("s_waitcnt lgkmcnt(0)")
    M = mfmas(var, 0)
    dma = {}
    for u, sl in enumerate(DMA1[ch]):
        d = dma_fn(u)
        if d: dma[sl] = d
    flow = (adv_w(var) if (ch == 1 and tail is None) else []) + list(extra1)
    pin1 = {}
    if not last:
        for i, it in enumerate(addr_updates(var, 2)):
            pin1.setdefault(len(OPTS["lp1"]) + i, []).append(it)
        assert len(OPTS["lp1"]) + 3 <= 10
    seq = sched(M, [cap] * 10, frag_reads(var, 1, 2), OPTS["lp1"], dma, flow, pin1)
    A.ext(seq)
    if vm_mid is not None:
        A(f"s_waitcnt vmcnt({vm_mid}) lgkmcnt(0)")
        A("s_barrier")
    else:
        A("s_waitcnt lgkmcnt(0)")
    M = mfmas(var, 1)
    M16 = mfma16(1)
    seq = []
    caps = []
    for i in range(10):
        seq.append(M[i]); caps.append(cap)
        if (not last and i % 2 == 1) or (last and i < 5):
            seq.append(M16[i // 2 if not last else i]); caps.append(2)
    dma = {}
    for u, sl in enumerate(DMA2[ch]):
        d = dma_fn(n1 + u)
        if d: dma[sl] = d
    flow = ([] if last else delta_calc()) + list(extra2)
    pin = {}
    UB = max(len(OPTS["lp2"]), 9)
    if not last:
        for i, it in enumerate(addr_updates(var, 1)):
            pin.setdefault(UB + i, []).append(it)

    def addpin(sl, items):
        pin.setdefault(min(sl, 14), []).extend(items)
    if tail is not None:
        pass
    elif ch == 0:
        aw = adv_w(var)
        L = DMA2[ch][-1]
        assert L < 14
        addpin(L + 1, aw[:2]); addpin(L + 2, aw[2:])
    else:
        ax = adv_x()
        L = DMA2[ch][3 - n1]
        addpin(L + 1, ax[:2]); addpin(L + 2, ax[2:])
        assert L + 2 < 14
    addpin(14, list(last_items))
    if last:
        out = sched(seq, caps, [], [], dma, flow, pin)
    else:
        out = sched(seq, caps, frag_reads(var, 0, 1), OPTS["lp2"], dma, flow, pin, flow_end=UB)
    A.ext(out)


def tag_compute(A):
    A(f"v_readfirstlane_b32 s{sTag}, v{vEpoch}")
    A(f"s_mul_i32 s{sTag}, s{sTag}, 0x9e3779b1")
    A(f"s_add_u32 s{sTag}, s{sTag}, 0x7f4a7c15")


def flag_store(A, soff_reg, tmp=2):
    A(f"v_mov_b32 v{tmp}, s{soff_reg}")
    A(f"v_mov_b32 v{tmp+1}, s{sTag}")
    A(f"s_mov_b64 exec, 1")
    A(f"buffer_store_dword v{tmp+1}, v{tmp}, {s(SRD_FLG,4)}, 0 offen sc1")
    A(f"s_mov_b64 exec, -1")


def poll_addr_w(A, dst, tmp):
    A(f"s_min_u32 s{sT0}, s{sNT}, 6")
    A(f"s_mul_i32 s{sT0}, s{sT0}, 144")
    A(f"s_mul_i32 s{sT1}, s{sW}, 28")
    A(f"s_add_u32 s{sT1}, s{sT1}, s{sT0}")
    A(f"s_lshl_b32 s{sT2}, s{sW}, 3")
    A(f"s_add_u32 s{sT2}, s{sT2}, s{sT0}")
    A(f"s_add_u32 s{sT2}, s{sT2}, {112-28}")
    A(f"v_mov_b32 v{dst}, s{sT1}")
    A(f"v_mov_b32 v{tmp}, s{sT2}")
    A(f"v_cmp_gt_u32 vcc, 28, v{vLane}")
    A("s_nop 1")
    A(f"v_cndmask_b32 v{dst}, v{tmp}, v{dst}, vcc")
    A(f"v_min_u32 v{tmp}, 35, v{vLane}")
    A(f"v_add_u32 v{dst}, v{dst}, v{tmp}")
    A(f"v_lshlrev_b32 v{dst}, 2, v{dst}")
    A(f"v_add_u32 v{dst}, {F_P}, v{dst}")


def poll_addr_s(A, dst):
    A(f"s_lshl_b32 s{sT0}, s{sR}, 8")
    A(f"s_add_u32 s{sT0}, s{sT0}, {F_P}")
    A(f"v_lshlrev_b32 v{dst}, 2, v{vLane}")
    A(f"v_add_u32 v{dst}, s{sT0}, v{dst}")


def spin(A, vaddr, vtmp, name, spin_max=200000):
    lab, done = A.new_label("spin" + name), A.new_label("sdone" + name)
    A(f"s_mov_b32 s{sT3}, 0")
    A.label(lab)
    A(f"buffer_load_dword v{vtmp}, v{vaddr}, {s(SRD_FLG,4)}, 0 offen sc1")
    A(f"s_add_u32 s{sT3}, s{sT3}, 1")
    A("s_waitcnt vmcnt(0)")
    A(f"v_cmp_ne_u32 vcc, s{sTag}, v{vtmp}")
    A(f"s_cbranch_vccz {done}")
    A(f"s_cmp_lt_u32 s{sT3}, {spin_max}")
    A(f"s_cbranch_scc1 {lab}")
    A.label(done)


def w2_load(q):
    r = w2reg(q)
    return [f"buffer_load_dwordx4 {r(0)}, v{vW2a}, {s(SRD_W2,4)}, s{sW2cur} offen sc1",
            f"buffer_load_dwordx4 {r(1)}, v{vW2b}, {s(SRD_W2,4)}, s{sW2cur} offen sc1"]


def w2_adv(q):
    if q < 27:
        return f"s_add_u32 s{sW2cur}, s{sW2cur}, 2048\ns_cmp_eq_u32 s{sW2cur}, s{sW2hi}\ns_cselect_b32 s{sW2cur}, s{sW2lo}, s{sW2cur}"
    if q == 27:
        return f"s_mov_b32 s{sW2cur}, s{sW2o}"
    return f"s_add_u32 s{sW2cur}, s{sW2cur}, 2048"


class W2Stream:
    def __init__(self):
        self.n = 0
    def next(self):
        q, ns = self.n >> 1, self.n & 1
        l = w2_load(q)[ns]
        pre = "" if (ns == 1 or q == 0) else w2_adv(q - 1)
        self.n += 1
        return pre, l


def loop(A, var, stamp, younger_g0, side):
    ch = int(var[1])
    stamp(A, 10)
    A(f"s_waitcnt vmcnt({younger_g0})")
    A("s_barrier")
    stamp(A, 1)
    A.ext(frag_reads(var, 0, 1))
    A(f"v_add_u32 v{vF1}, {WSLOT}, v{vF1}")
    if uses_n(var):
        A(f"v_add_u32 v{vN1}, {WSLOT}, v{vN1}")
    A(f"v_xor_b32 v{vX1}, 64, v{vX1}")
    lab = A.new_label(f"p1loop{var}")
    levt, lback = A.new_label("evt"), A.new_label("back")
    A.label(lab)
    n1 = len(DMA1[ch])
    stage(A, var, lambda u: dma_unit(var, u), 7 + n1, [f"s_add_u32 s{sCnt}, s{sCnt}, 1"])
    A(f"s_cmp_eq_u32 s{sCnt}, s{sEvt}")
    A(f"s_cbranch_scc1 {levt}")
    A.label(lback)
    A(f"s_cmp_lt_u32 s{sCnt}, {NMAIN}")
    A(f"s_cbranch_scc1 {lab}")

    def emit_side(A):
        A.label(levt)
        l2 = A.new_label("evt2")
        A(f"s_cmp_eq_u32 s{sEvt}, 2")
        A(f"s_cbranch_scc0 {l2}")
        tag_compute(A)
        A(f"s_lshl_b32 s{sT0}, s{sGid}, 2")
        A(f"s_add_u32 s{sT0}, s{sT0}, {F_P}")
        flag_store(A, sT0)
        A(f"s_mov_b32 s{sEvt}, 8")
        A(f"s_branch {lback}")
        A.label(l2)
        poll_addr_w(A, 2, 3)
        poll_addr_s(A, 4)
        A(f"buffer_load_dword v{vPollW}, v2, {s(SRD_FLG,4)}, 0 offen sc1")
        A(f"buffer_load_dword v{vPollS}, v4, {s(SRD_FLG,4)}, 0 offen sc1")
        A(f"s_mov_b32 s{sEvt}, 99")
        A(f"s_branch {lback}")
    side.append(emit_side)

    lslow, lok = A.new_label("slow"), A.new_label("pok")
    A(f"v_cmp_ne_u32 vcc, s{sTag}, v{vPollW}")
    A(f"v_cmp_ne_u32 {s(sL28,2)}, s{sTag}, v{vPollS}")
    A(f"s_min_u32 s{sT0}, s{sNT}, 7")
    A(f"s_mul_i32 s{sT0}, s{sT0}, {144*2048}")
    A(f"s_mul_i32 s{sT1}, s{sW}, {28*2048}")
    A(f"s_add_u32 s{sW2lo}, s{sT0}, s{sT1}")
    A(f"s_add_u32 s{sW2hi}, s{sW2lo}, {28*2048}")
    A(f"s_lshl_b32 s{sT1}, s{sW}, 14")
    A(f"s_add_u32 s{sW2o}, s{sT0}, s{sT1}")
    A(f"s_add_u32 s{sW2o}, s{sW2o}, {112*2048}")
    A(f"s_lshl_b32 s{sT1}, s{sNT}, 13")
    A(f"s_cmp_eq_u32 s{sNT}, 7")
    A(f"s_cselect_b32 s{sT1}, 0, s{sT1}")
    A(f"s_add_u32 s{sW2cur}, s{sW2lo}, s{sT1}")
    A(f"s_or_b64 vcc, vcc, {s(sL28,2)}")
    A(f"s_cbranch_vccnz {lslow}")
    A.label(lok)

    def emit_slow(A):
        A.label(lslow)
        poll_addr_w(A, 2, 3)
        spin(A, 2, 3, "W")
        poll_addr_s(A, 4)
        spin(A, 4, 3, "S")
        A(f"s_branch {lok}")
    side.append(emit_slow)

    st = W2Stream()
    pre_units = []
    A(f"v_and_b32 v2, 31, v{vLane}")
    A(f"v_lshlrev_b32 v2, 3, v2")
    A(f"s_lshl_b32 s{sT0}, s{sR}, 10")
    A(f"s_lshl_b32 s{sT1}, s{sRH}, 9")
    A(f"s_add_u32 s{sT0}, s{sT0}, s{sT1}")
    A(f"s_add_u32 s{sT0}, s{sT0}, {STAT}")
    A(f"buffer_load_dwordx2 {v(vST,2)}, v2, {s(SRD_FLG,4)}, s{sT0} offen sc1")
    A(f"buffer_load_dwordx2 {v(vST+2,2)}, v2, {s(SRD_FLG,4)}, s{sT0} offen offset:256 sc1")
    nstat = 2
    if ch == 1:
        A(f"v_lshlrev_b32 v2, 3, v{vLane}")
        A(f"buffer_load_dword v{vRSl}, v2, {s(SRD_FLG,4)}, s{sT0} offen offset:4 sc1")
        nstat = 3
    for tl in range(3):
        vm = [7 + nstat + n1, nstat + 7 + n1, None][tl]
        extra2 = []
        if tl == 2:
            CF = vE + 24
            extra2 = [f"v_mov_b32 v{CF+4*t+i}, 0" for t in range(5) for i in range(1, 4)]
            extra2 += [f"v_mov_b32 v{xf(0,lt)+i}, 0" for lt in range(2) for i in range(1, 4)]
            extra2 += [f"v_cmp_gt_u32 {s(sLO,2)}, 32, v{vLane}"]
        stage(A, var, lambda u: st.next(), vm, tail=tl, extra2=extra2)
    return st


def fold(A, var, st):
    ch = int(var[1])
    t2, t3 = vE + 2, vE + 3
    A(f"s_mul_i32 s{sT0}, s{sW}, 640")
    A(f"v_and_b32 v{t3}, 31, v{vLane}")
    A(f"v_lshlrev_b32 v{t3}, 2, v{t3}")
    A(f"v_add_u32 v{t3}, {CSX}, v{t3}")
    A(f"v_add_u32 v{t2}, s{sT0}, v{t3}")
    A("s_nop 3")
    for t in range(5):
        A(f"v_accvgpr_read_b32 v{vE+8+t}, a{aCS+4*t}")
    for t in range(5):
        A(f"ds_write_b32 v{t2}, v{vE+8+t} offset:{128*t}")
    A(f"s_xor_b32 s{sT0}, s{sW}, 2")
    A(f"s_mul_i32 s{sT0}, s{sT0}, 640")
    A(f"v_add_u32 v{t3}, s{sT0}, v{t3}")
    while st.n < 30:
        p, l = st.next()
        A(p); A(l)
    if ch == 1:
        A(f"s_waitcnt vmcnt({st.n})")
        A(f"s_lshl_b32 s{sT0}, s{sRH}, 8")
        A(f"s_add_u32 s{sT0}, s{sT0}, {RSTD}")
        A(f"v_lshlrev_b32 v{t2}, 2, v{vLane}")
        A(f"v_add_u32 v{t2}, s{sT0}, v{t2}")
        A(f"ds_write_b32 v{t2}, v{vRSl}")
    A("s_waitcnt lgkmcnt(0)")
    A("s_barrier")
    for t in range(5):
        A(f"ds_read_b32 v{vE+16+t}, v{t3} offset:{128*t}")
    if ch == 0:
        A(f"s_waitcnt vmcnt({st.n})")
    for lt in range(2):
        A(f"v_cndmask_b32 v{xf(0,lt)}, 0, v{vST+2*lt}, {s(sLO,2)}")
    while st.n < 38:
        p, l = st.next()
        A(p); A(l)
    A("s_waitcnt lgkmcnt(0)")
    CF = vE + 24
    for t in range(5):
        c_ = vE + 8 + t
        A(f"v_add_f32 v{c_}, v{c_}, v{vE+16+t}")
        A(f"v_cvt_pk_bf16_f32 v{vE+16+t}, v{c_}, v{c_}")
        A(f"v_and_b32 v{vE+16+t}, s{sMask}, v{vE+16+t}")
        A(f"v_sub_f32 v{c_}, v{c_}, v{vE+16+t}")
        A(f"v_cvt_pk_bf16_f32 v{c_}, v{vE+16+t}, v{c_}")
        A(f"v_cndmask_b32 v{CF+4*t}, 0, v{c_}, {s(sLO,2)}")
    A("s_nop 1")
    order = sorted(range(5), key=lambda t: {"K": 0, "V": 1, "F": 2, "Q": 3}[VAR[var][t][0]])
    M = []
    for t in order:
        for lt in range(2):
            A_ = v(CF + 4 * t, 4)
            B_ = v(xf(0, lt), 4)
            if swapped(var, t):
                A_, B_ = B_, A_
            D = v(acc(t, lt), 16)
            M.append(f"v_mfma_f32_32x32x16_bf16 {D}, {A_}, {B_}, {D}")
    F = []
    while st.n < 48:
        p, l = st.next()
        F.append(p + "\n" + l)
    A.ext(interleave(M, F))


LOG2E = "0x3fb8aa3b"
EPS6 = "0x358637bd"


def epi_F(A, t, lt, T_s):
    ac = acc(t, lt)
    r2 = vE + 40 + 2 * lt
    for j in range(0, 8, 2):
        A(f"v_max_f32 v{ac+j}, 0, v{ac+j}")
        A(f"v_max_f32 v{ac+j+1}, 0, v{ac+j+1}")
        A(f"v_pk_mul_f32 {v(ac+8+j,2)}, {v(ac+8+j,2)}, {v(r2,2)}")
        A(f"v_pk_mul_f32 {v(ac+j,2)}, {v(ac+j,2)}, {v(ac+8+j,2)}")
        A(f"v_cvt_pk_bf16_f32 v{ac+j//2}, v{ac+j}, v{ac+j+1}")
    A(f"buffer_store_dwordx4 {v(ac,4)}, v{vL16}, {s(SRD_ACT,4)}, s{T_s} offen sc1")


def phi_pair(A, x0, rs_a, rs_b, tmp, out):
    ta, tb = tmp, tmp + 2
    A(f"v_pk_mul_f32 {v(ta,2)}, {v(x0,2)}, {v(rs_a,2)}")
    A(f"v_pk_fma_f32 {v(tb,2)}, {v(x0,2)}, {v(rs_b,2)}, {v(vE+38,2)}")
    A(f"v_exp_f32 v{ta}, v{ta} clamp")
    A(f"v_exp_f32 v{ta+1}, v{ta+1} clamp")
    A(f"v_max_f32 v{tb}, v{vE+38}, v{tb}")
    A(f"v_max_f32 v{tb+1}, v{vE+38}, v{tb+1}")
    A(f"v_pk_add_f32 {v(ta,2)}, {v(ta,2)}, {v(tb,2)}")
    A(f"v_cvt_pk_bf16_f32 v{out}, v{ta}, v{ta+1}")


def epilogue(A, var, st, stamp):
    tiles = VAR[var]
    kinds = [k for k, _ in tiles]
    ch = int(var[1])
    rs = lambda lt: vST + 2 * lt + 1
    A(f"v_mov_b32 v{vE+38}, {EPS6}")
    A(f"v_mov_b32 v{vE+39}, {EPS6}")
    for lt in range(2):
        A(f"v_mul_f32 v{vE+40+2*lt}, v{rs(lt)}, v{rs(lt)}")
        A(f"v_mov_b32 v{vE+41+2*lt}, v{vE+40+2*lt}")
    A(f"s_lshl_b32 s{sT0}, s{sR}, 2")
    A(f"s_lshl_b32 s{sT1}, s{sRH}, 1")
    A(f"s_add_u32 s{sT0}, s{sT0}, s{sT1}")
    A(f"s_mul_i32 s{sT0}, s{sT0}, {144*1024}")
    A(f"s_lshl_b32 s{sT1}, s{sTb}, 10")
    A(f"s_add_u32 s{sT1}, s{sT1}, s{sT0}")
    ops = []

    def w2more(n):
        for _ in range(n):
            if st.n < 64:
                p, l = st.next()
                A(p); A(l)
                ops.append("w")
    KV = xf(0, 0)
    if "K" in kinds:
        tK, tV = kinds.index("K"), kinds.index("V")
        RS = vE + 8
        PK = vE + 24
        A(f"v_lshrrev_b32 v{vE}, 5, v{vLane}")
        A(f"v_lshlrev_b32 v{vE}, 4, v{vE}")
        A(f"s_lshl_b32 s{sT2}, s{sRH}, 8")
        A(f"v_add_u32 v{vE}, s{sT2}, v{vE}")
        A(f"v_add_u32 v{vE}, {RSTD}, v{vE}")
        for g in range(4):
            A(f"ds_read_b128 {v(RS+4*g,4)}, v{vE} offset:{32*g}")
        A(f"v_and_b32 v{vE+1}, 31, v{vLane}")
        A(f"v_cmp_eq_u32 {s(sL28,2)}, 28, v{vE+1}")
        A(f"v_mov_b32 v{vE+2}, {LOG2E}")
        A(f"v_mov_b32 v{vE+3}, {LOG2E}")
        A(f"v_mov_b32 v{vE+46}, 0x3f803f80")
        for lt in range(2):
            A("s_waitcnt lgkmcnt(0)")
            k0, v0_ = acc(tK, lt), acc(tV, lt)
            if lt == 0:
                A("s_nop 7")
            for j in range(0, 16, 2):
                A(f"v_pk_mul_f32 {v(v0_+j,2)}, {v(v0_+j,2)}, {v(RS+j,2)}")
                A(f"v_pk_mul_f32 {v(k0+j,2)}, {v(k0+j,2)}, {v(RS+j,2)}")
                A(f"v_cvt_pk_bf16_f32 v{v0_+j//2}, v{v0_+j}, v{v0_+j+1}")
            if lt == 0:
                A("s_nop 1")
                for g in range(4):
                    A(f"ds_read_b128 {v(RS+4*g,4)}, v{vE} offset:{128+32*g}")
            for j in range(8):
                A(f"v_cndmask_b32 v{v0_+j}, v{v0_+j}, v{vE+46}, {s(sL28,2)}")
            for j in range(0, 16, 2):
                A(f"v_pk_mul_f32 {v(vE+32,2)}, {v(k0+j,2)}, {v(vE+2,2)}")
                A(f"v_pk_add_f32 {v(vE+34,2)}, {v(k0+j,2)}, {v(vE+38,2)}")
                A(f"v_exp_f32 v{vE+32}, v{vE+32} clamp")
                A(f"v_exp_f32 v{vE+33}, v{vE+33} clamp")
                A(f"v_max_f32 v{vE+34}, v{vE+38}, v{vE+34}")
                A(f"v_max_f32 v{vE+35}, v{vE+38}, v{vE+35}")
                A(f"v_pk_add_f32 {v(vE+32,2)}, {v(vE+32,2)}, {v(vE+34,2)}")
                A(f"v_cvt_pk_bf16_f32 v{PK+j//2}, v{vE+32}, v{vE+33}")
                if j % 4 == 2:
                    w2more(1)
            A("s_nop 1")
            for u in range(2):
                C = "0" if (lt == 0 and u == 0) else v(KV, 16)
                A(f"v_mfma_f32_32x32x16_bf16 {v(KV,16)}, {v(PK+4*u,4)}, {v(v0_+4*u,4)}, {C}")
    else:
        A("s_nop 7")
        A("s_nop 7")
    pending_kv = "K" in kinds

    def kv_store():
        A(f"s_lshl_b32 s{sT3}, s{sHKV}, 5")
        A(f"s_lshl_b32 s{sT2}, s{sR}, 1")
        A(f"s_add_u32 s{sT3}, s{sT3}, s{sT2}")
        A(f"s_add_u32 s{sT3}, s{sT3}, s{sRH}")
        A(f"s_lshl_b32 s{sT3}, s{sT3}, 12")
        for g in range(4):
            A(f"buffer_store_dwordx4 {v(KV+4*g,4)}, v{vL16}, {s(SRD_KVP,4)}, s{sT3} offen offset:{1024*g} sc1")
            ops.append("kv")

    def wait_for(tag):
        last = max(i for i, t in enumerate(ops) if t == tag)
        A(f"s_waitcnt vmcnt({len(ops) - 1 - last})")

    def flagK():
        wait_for("kv")
        A(f"s_lshl_b32 s{sT2}, s{sC}, 7")
        A(f"s_lshl_b32 s{sT3}, s{sR}, 3")
        A(f"s_add_u32 s{sT2}, s{sT2}, s{sT3}")
        A(f"s_lshl_b32 s{sT3}, s{sRH}, 2")
        A(f"s_add_u32 s{sT2}, s{sT2}, s{sT3}")
        A(f"s_add_u32 s{sT2}, s{sT2}, {F_K}")
        flag_store(A, sT2)
        ops.append("fk")

    def flagA():
        wait_for("f")
        A(f"s_lshl_b32 s{sT2}, s{sR}, 1")
        A(f"s_add_u32 s{sT2}, s{sT2}, s{sRH}")
        A(f"s_lshl_b32 s{sT2}, s{sT2}, 7")
        A(f"s_lshl_b32 s{sT3}, s{sC}, 3")
        A(f"s_add_u32 s{sT2}, s{sT2}, s{sT3}")
        A(f"s_add_u32 s{sT2}, s{sT2}, {F_A + 4*ch}")
        flag_store(A, sT2)
        ops.append("fa")

    def flagQ():
        wait_for("q")
        A(f"s_lshl_b32 s{sT2}, s{sR}, 1")
        A(f"s_add_u32 s{sT2}, s{sT2}, s{sRH}")
        A(f"s_lshl_b32 s{sT2}, s{sT2}, 5")
        A(f"s_lshl_b32 s{sT3}, s{sC}, 3")
        A(f"s_add_u32 s{sT2}, s{sT2}, s{sT3}")
        A(f"s_add_u32 s{sT2}, s{sT2}, {F_Q + 4*ch - 96}")
        flag_store(A, sT2)
        ops.append("fq")

    first = True
    for t, (k, i) in enumerate(tiles):
        if k != "F":
            continue
        for lt in range(2):
            A(f"s_add_u32 s{sT2}, s{sT1}, {lt*144*1024 + i*1024}")
            epi_F(A, t, lt, sT2)
            ops.append("f")
            if pending_kv:
                kv_store()
                pending_kv = False
            w2more(2)
    stamp(A, 3)
    w2more(16)
    assert st.n == 64

    def w2last():
        while st.n < 72:
            p, l = st.next()
            A(p); A(l)
            ops.append("w")
    if "Q" in kinds:
        A(f"v_mov_b32 v{vE}, {LOG2E}")
        for lt in range(2):
            ra, rb = vE + 8 + 4 * lt, vE + 10 + 4 * lt
            A(f"v_mul_f32 v{ra}, v{vE}, v{rs(lt)}")
            A(f"v_mov_b32 v{ra+1}, v{ra}")
            A(f"v_mov_b32 v{rb}, v{rs(lt)}")
            A(f"v_mov_b32 v{rb+1}, v{rs(lt)}")
        A(f"v_cmp_gt_u32 {s(sLO,2)}, 32, v{vLane}")
        A(f"s_lshl_b32 s{sT3}, s{sHQ}, 11")
        A(f"s_add_u32 s{sT1}, s{sT3}, s{sT0}")
        qn = 0
        nq = sum(1 for k in kinds if k == "Q")
        for t, (k, q) in enumerate(tiles):
            if k != "Q":
                continue
            for lt in range(2):
                ra, rb = vE + 8 + 4 * lt, vE + 10 + 4 * lt
                q0 = acc(t, lt)
                for j in range(0, 16, 2):
                    phi_pair(A, q0 + j, ra, rb, vE + 32, q0 + j // 2)
                A(f"v_cndmask_b32 v{q0+6}, 0, v{q0+6}, {s(sLO,2)}")
                A(f"v_cndmask_b32 v{q0+7}, 0, v{q0+7}, {s(sLO,2)}")
                for u in range(2):
                    A(f"s_add_u32 s{sT2}, s{sT1}, {lt*144*1024 + (112+2*q+u)*1024}")
                    A(f"buffer_store_dwordx4 {v(q0+4*u,4)}, v{vL16}, {s(SRD_ACT,4)}, s{sT2} offen sc1")
                    ops.append("q")
            qn += 1
            if (nq == 3 and qn == 2) or (nq == 1 and qn == 1):
                if "K" in kinds:
                    flagK()
                flagA()
        flagQ_pending = True
    else:
        flagQ_pending = False
    stamp(A, 4)
    A("s_nop 1")
    w2last()
    if "Q" not in kinds:
        if "K" in kinds:
            flagK()
        flagA()
    else:
        flagQ()
    stamp(A, 5)
```

```python
from common import *
import q1
from q1 import (ACT_OFF, ACT_BYTES, KVP_OFF, KVP_BYTES, KVF_OFF, KVF_BYTES, F_A, F_F, F_Q, F_K, EPOCH, SRD_FLG,
                sMT, sNT, sTag, sOUTp, sW, w2reg, spin, flag_store, vL16, vLane)

sXp, sWSp = 4, 12
SRD_X, SRD_ACT2, SRD_KVF, SRD_OUT = 24, 28, 32, 40
sT0, sT1, sT2, sT3 = 48, 49, 50, 51
sLO = 54
sHcur, sHlo, sHhi, sPQ = 56, 57, 58, 59
vT = 2
vXR = 6
vOO = 14
vH = 16
NH = 18
vACC = 160
vH0, vH1 = 20 + 0, 0
aKV = 64
OPT = {"qpoll": 6, "qchk": 9, "fpoll": 17, "fchk": 22}


def acc(j):
    return vACC + 16 * j


def hslot(i):
    return vH + 8 * (i % NH)


class VM:
    def __init__(self, A):
        self.A, self.issued = A, []
    def issue(self, lst, tag):
        for l in lst:
            self.A(l)
            self.issued.append(tag)
    def wait(self, tag):
        last = max(i for i, t in enumerate(self.issued) if t == tag)
        n = len(self.issued) - 1 - last
        self.A(f"s_waitcnt vmcnt({min(n,63)})")


vHA, vHB = 4, 5
vT = 2


def h_load(kk, sc=" sc1"):
    return [f"buffer_load_dwordx4 {v(hslot(kk),4)}, v{vHA}, {s(SRD_ACT2,4)}, s{sHcur} offen{sc}",
            f"buffer_load_dwordx4 {v(hslot(kk)+4,4)}, v{vHB}, {s(SRD_ACT2,4)}, s{sHcur} offen{sc}"]


def h_adv(kk):
    if kk < 27:
        return f"s_add_u32 s{sHcur}, s{sHcur}, 1024\ns_cmp_eq_u32 s{sHcur}, s{sHhi}\ns_cselect_b32 s{sHcur}, s{sHlo}, s{sHcur}"
    if kk == 27:
        return f"s_mov_b32 s{sHcur}, s{sPQ}"
    return f"s_add_u32 s{sHcur}, s{sHcur}, 1024"


def phase2(A, stamp, side):
    srd(A, SRD_KVF, sWSp, KVF_BYTES, KVF_OFF)
    srd(A, SRD_X, sXp, 2048 * 896)
    srd(A, SRD_OUT, sOUTp, 2048 * 896)
    A(f"s_mul_i32 s{sT0}, s{sMT}, {2*144*1024}")
    A(f"s_mul_i32 s{sT1}, s{sW}, {28*1024}")
    A(f"s_add_u32 s{sHlo}, s{sT0}, s{sT1}")
    A(f"s_add_u32 s{sHhi}, s{sHlo}, {28*1024}")
    A(f"s_lshl_b32 s{sT1}, s{sW}, 13")
    A(f"s_add_u32 s{sPQ}, s{sT0}, s{sT1}")
    A(f"s_add_u32 s{sPQ}, s{sPQ}, {112*1024}")
    A(f"s_lshl_b32 s{sT1}, s{sNT}, 12")
    A(f"s_add_u32 s{sHcur}, s{sHlo}, s{sT1}")
    A(f"s_and_b32 s{sT0}, s{sW}, 1")
    A(f"s_mul_i32 s{sT0}, s{sT0}, {144*1024}")
    A(f"s_sub_u32 s{sT1}, {144*1024}, s{sT0}")
    A(f"v_add_u32 v{vHA}, s{sT0}, v{vL16}")
    A(f"v_add_u32 v{vHB}, s{sT1}, v{vL16}")
    A(f"v_cmp_gt_u32 {s(sLO,2)}, 32, v{vLane}")
    A(f"v_and_b32 v{vT}, 31, v{vLane}")
    A(f"v_lshlrev_b32 v{vT}, 2, v{vT}")
    A(f"s_lshl_b32 s{sT0}, s{sMT}, 7")
    A(f"v_add_u32 v{vT}, s{sT0}, v{vT}")
    stamp(A, 6)
    spin(A, vT, vT + 1, "A")
    stamp(A, 7)
    vm = VM(A)
    nxt = 0

    def issue_h():
        nonlocal nxt
        if nxt > 0:
            A(h_adv(nxt - 1))
        vm.issue(h_load(nxt), ("h", nxt))
        nxt += 1
    for _ in range(NH):
        issue_h()
    A(f"v_and_b32 v{vOO}, 31, v{vLane}")
    A(f"v_mul_u32_u24 v{vOO}, 896, v{vOO}")
    A(f"s_lshl_b32 s{sT0}, s{sMT}, 1")
    A(f"s_and_b32 s{sT1}, s{sW}, 1")
    A(f"s_add_u32 s{sT0}, s{sT0}, s{sT1}")
    A(f"s_mul_i32 s{sT0}, s{sT0}, {32*896}")
    A(f"s_lshl_b32 s{sT1}, s{sNT}, 7")
    A(f"s_add_u32 s{sT0}, s{sT0}, s{sT1}")
    A(f"s_lshr_b32 s{sT1}, s{sW}, 1")
    A(f"s_lshl_b32 s{sT1}, s{sT1}, 6")
    A(f"s_add_u32 s{sT0}, s{sT0}, s{sT1}")
    A(f"v_add_u32 v{vOO}, s{sT0}, v{vOO}")
    A(f"v_lshrrev_b32 v{vT}, 5, v{vLane}")
    A(f"v_lshlrev_b32 v{vT}, 3, v{vT}")
    A(f"v_add_u32 v{vT}, v{vT}, v{vOO}")
    vm.issue([f"buffer_load_dwordx2 {v(vXR+2*g,2)}, v{vT}, {s(SRD_X,4)}, 0 offen offset:{16*g}" for g in range(4)], "x")

    def async_poll(addr_code, tag):
        addr_code()
        vm.issue([f"buffer_load_dword v{vT+1}, v{vT}, {s(SRD_FLG,4)}, 0 offen sc1"], tag)

    def check_poll(addr_code, tag, name):
        slow, ok = A.new_label("slow" + name), A.new_label("ok" + name)
        vm.wait(tag)
        A(f"v_cmp_ne_u32 vcc, s{sTag}, v{vT+1}")
        A("s_nop 1")
        A(f"s_cbranch_vccnz {slow}")
        A.label(ok)

        def emit(A):
            A.label(slow)
            spin(A, vT, vT + 1, name)
            A(f"s_branch {ok}")
        side.append(emit)

    def addr_q():
        A(f"v_and_b32 v{vT}, 7, v{vLane}")
        A(f"v_lshlrev_b32 v{vT}, 2, v{vT}")
        A(f"s_lshl_b32 s{sT0}, s{sMT}, 5")
        A(f"s_add_u32 s{sT0}, s{sT0}, {F_Q}")
        A(f"v_add_u32 v{vT}, s{sT0}, v{vT}")

    def addr_f():
        A(f"v_and_b32 v{vT}, 7, v{vLane}")
        A(f"v_lshlrev_b32 v{vT}, 2, v{vT}")
        A(f"s_lshl_b32 s{sT0}, s{sW}, 5")
        A(f"s_add_u32 s{sT0}, s{sT0}, {F_F}")
        A(f"v_add_u32 v{vT}, s{sT0}, v{vT}")

    def kv_loads():
        L = []
        for a_ in range(4):
            for u in range(2):
                L.append(f"buffer_load_dwordx4 {a(aKV+8*a_+4*u,4)}, v{vL16}, {s(SRD_KVF,4)}, s{sT0} offen offset:{((2*a_+u)&3)*1024} sc1")
        return L

    for kk in range(28):
        vm.wait(("h", kk))
        r = w2reg(kk)
        for ns in range(2):
            for ss in range(2):
                j = 2 * ns + ss
                C = "0" if kk == 0 else v(acc(j), 16)
                A(f"v_mfma_f32_32x32x16_bf16 {v(acc(j),16)}, {r(ns)}, {v(hslot(kk)+4*ss,4)}, {C}")
        if kk == OPT["qchk"]:
            check_poll(addr_q, "qp", "Q")
        if nxt < 36:
            assert nxt < 28 or kk >= OPT["qchk"]
            issue_h()
        if kk == OPT["qpoll"]:
            async_poll(addr_q, "qp")
        if kk == OPT["fpoll"]:
            async_poll(addr_f, "fp")
        if kk == OPT["fchk"]:
            check_poll(addr_f, "fp", "F")
            A(f"s_lshl_b32 s{sT0}, s{sW}, 13")
            L = kv_loads()
            vm.issue(L[:4], "kv")
            A(f"s_add_u32 s{sT0}, s{sT0}, 4096")
            vm.issue(L[4:], "kv")
    stamp(A, 8)
    assert nxt == 36
    vm.wait("kv")
    vm.wait(("h", 35))
    stamp(A, 9)
    NUM = lambda a_, ss: hslot(4 * (a_ & 1) + 2 * ss)

    def Nm(a_):
        kk0 = 28 + 2 * a_
        M = []
        for ss in range(2):
            M.append(f"v_mfma_f32_32x32x16_bf16 {v(NUM(a_,ss),16)}, {a(aKV+8*a_,4)}, {v(hslot(kk0)+4*ss,4)}, 0")
        for ss in range(2):
            M.append(f"v_mfma_f32_32x32x16_bf16 {v(NUM(a_,ss),16)}, {a(aKV+8*a_+4,4)}, {v(hslot(kk0+1)+4*ss,4)}, {v(NUM(a_,ss),16)}")
        return M

    def Vn(a_):
        L = []
        for ss in range(2):
            n = NUM(a_, ss)
            t = vT
            L.append(f"v_mov_b32 v{vT}, v{n+12}\nv_mov_b32 v{vT+1}, v{n+12}\ns_nop 1\nv_permlane32_swap_b32 v{vT}, v{vT+1}\ns_nop 1\n"
                     f"v_add_f32 v{vT}, {q1.EPS6}, v{vT+1}\nv_rcp_f32 v{vT}, v{vT}\ns_nop 0\nv_mov_b32 v{vT+1}, v{vT}")
            for j in range(0, 16, 2):
                L.append(f"v_pk_mul_f32 {v(n+j,2)}, {v(n+j,2)}, {v(vT,2)}\nv_cvt_pk_bf16_f32 v{n+j//2}, v{n+j}, v{n+j+1}")
            L.append(f"v_cndmask_b32 v{n+6}, 0, v{n+6}, {s(sLO,2)}\nv_cndmask_b32 v{n+7}, 0, v{n+7}, {s(sLO,2)}")
        return L

    def Wm(a_):
        M = []
        for u in range(2):
            kk = 28 + 2 * a_ + u
            r = w2reg(kk)
            for ns in range(2):
                for ss in range(2):
                    j = 2 * ns + ss
                    M.append(f"v_mfma_f32_32x32x16_bf16 {v(acc(j),16)}, {r(ns)}, {v(NUM(a_,ss)+4*u,4)}, {v(acc(j),16)}")
        return M
    A.ext(Nm(0))
    A.ext(Nm(1))
    A("s_nop 7")
    A.ext(Vn(0))
    A("s_nop 1")
    for a_ in range(4):
        M = Wm(a_)
        F = Vn(a_ + 1) if a_ + 1 < 4 else []
        if F:
            out = interleave(M, F, [0, 3, 3, 3, 3, 3, 3, 2])
        else:
            out = M
        A.ext(out)
        if a_ + 2 < 4:
            A.ext(Nm(a_ + 2))
            A("s_nop 7")
            A("s_nop 3")
        A("s_nop 1")
    stamp(A, 10)
    A("s_nop 7")
    A("s_nop 3")
    for j in range(1, 4):
        A(f"s_xor_b32 s{sT0}, s{sW}, {j}")
        A(f"s_mul_i32 s{sT0}, s{sT0}, {3*4096}")
        A(f"v_add_u32 v{vT}, s{sT0}, v{vL16}")
        for g in range(4):
            A(f"ds_write_b128 v{vT}, {v(acc(j)+4*g,4)} offset:{(j-1)*4096 + g*1024}")
    A(f"s_mul_i32 s{sT0}, s{sW}, {3*4096}")
    A(f"v_add_u32 v{vT}, s{sT0}, v{vL16}")
    A("s_waitcnt lgkmcnt(0)")
    A("s_barrier")
    R = vH
    for j in range(3):
        for g in range(4):
            A(f"ds_read_b128 {v(R+16*j+4*g,4)}, v{vT} offset:{j*4096 + g*1024}")
    vm.wait("x")
    a0 = acc(0)
    for g in range(4):
        for e in range(2):
            A(f"v_lshlrev_b32 v{vT+1}, 16, v{vXR+2*g+e}")
            A(f"v_add_f32 v{a0+4*g+2*e}, v{a0+4*g+2*e}, v{vT+1}")
            A(f"v_and_b32 v{vT+1}, 0xffff0000, v{vXR+2*g+e}")
            A(f"v_add_f32 v{a0+4*g+2*e+1}, v{a0+4*g+2*e+1}, v{vT+1}")
    for j in range(3):
        A(f"s_waitcnt lgkmcnt({4*(2-j)})")
        for i in range(0, 16, 2):
            A(f"v_pk_add_f32 {v(a0+i,2)}, {v(a0+i,2)}, {v(R+16*j+i,2)}")
    P = vXR
    for g in range(4):
        for e in range(2):
            A(f"v_cvt_pk_bf16_f32 v{P+2*g+e}, v{a0+4*g+2*e}, v{a0+4*g+2*e+1}")
    A(f"v_lshrrev_b32 v{vT}, 5, v{vLane}")
    A(f"v_lshlrev_b32 v{vT}, 4, v{vT}")
    A(f"v_add_u32 v{vT}, v{vT}, v{vOO}")
    for pr in range(2):
        A(f"v_permlane32_swap_b32 v{P+4*pr}, v{P+4*pr+2}")
        A(f"v_permlane32_swap_b32 v{P+4*pr+1}, v{P+4*pr+3}")
    A("s_nop 1")
    for pr in range(2):
        A(f"buffer_store_dwordx4 {v(P+4*pr,4)}, v{vT}, {s(SRD_OUT,4)}, 0 offen offset:{32*pr}")
    skip = A.new_label("noepoch")
    A(f"s_or_b32 s{sT0}, s2, s{sW}")
    A(f"s_cmp_lg_u32 s{sT0}, 0")
    A(f"s_cbranch_scc1 {skip}")
    A(f"s_mov_b32 s{sT0}, {EPOCH}")
    flag_store(A, sT0)
    A.label(skip)


def reducer(A, stamp):
    sHh, sU_, sCh = 47, 52, 53
    SRD_P = 20
    srd(A, SRD_P, sWSp, KVP_BYTES, KVP_OFF)
    srd(A, SRD_KVF, sWSp, KVF_BYTES, KVF_OFF)
    A(f"s_lshr_b32 s{sHh}, s{sMT}, 1")
    A(f"s_and_b32 s{sU_}, s{sMT}, 1")
    A(f"s_add_u32 s{sT0}, s{sHh}, 7")
    A(f"s_add_u32 s{sT1}, s{sHh}, 16")
    A(f"s_bitcmp1_b32 s{sHh}, 0")
    A(f"s_cselect_b32 s{sT0}, s{sT0}, s{sT1}")
    A(f"s_lshr_b32 s{sT0}, s{sT0}, 1")
    A(f"s_cmp_lt_u32 s{sHh}, 8")
    A(f"s_cselect_b32 s{sCh}, s{sHh}, s{sT0}")
    A(f"v_and_b32 v2, 31, v{vLane}")
    A(f"v_lshlrev_b32 v2, 2, v2")
    A(f"s_lshl_b32 s{sT0}, s{sCh}, 7")
    A(f"s_add_u32 s{sT0}, s{sT0}, {F_K}")
    A(f"v_add_u32 v2, s{sT0}, v2")
    A(f"s_lshl_b32 s{sT0}, s{sHh}, 17")
    A(f"s_lshr_b32 s{sT1}, s{sW}, 1")
    A(f"s_lshl_b32 s{sT1}, s{sT1}, 16")
    A(f"s_add_u32 s{sT0}, s{sT0}, s{sT1}")
    A(f"s_and_b32 s{sT1}, s{sW}, 1")
    A(f"s_lshl_b32 s{sT2}, s{sU_}, 1")
    A(f"s_add_u32 s{sT1}, s{sT1}, s{sT2}")
    A(f"s_lshl_b32 s{sT1}, s{sT1}, 10")
    A(f"s_add_u32 s{sT0}, s{sT0}, s{sT1}")
    spin(A, 2, 3, "R")
    stamp(A, 7)
    for p in range(16):
        A(f"s_add_u32 s{sT1}, s{sT0}, {p*4096}")
        A(f"buffer_load_dwordx4 {v(16+4*p,4)}, v{vL16}, {s(SRD_P,4)}, s{sT1} offen sc1")
    for p in range(1, 16):
        A(f"s_waitcnt vmcnt({15-p})")
        A(f"v_pk_add_f32 v[16:17], v[16:17], {v(16+4*p,2)}")
        A(f"v_pk_add_f32 v[18:19], v[18:19], {v(18+4*p,2)}")
    A(f"s_lshl_b32 s{sT1}, s{sW}, 10")
    A(f"v_add_u32 v5, s{sT1}, v{vL16}")
    A("ds_write_b128 v5, v[16:19]")
    A("s_waitcnt lgkmcnt(0)")
    A("s_barrier")
    done = A.new_label("reddone")
    A(f"s_cmp_lg_u32 s{sW}, 0")
    A(f"s_cbranch_scc1 {done}")
    A(f"ds_read_b128 v[20:23], v{vL16} offset:2048")
    A(f"ds_read_b128 v[24:27], v{vL16} offset:1024")
    A(f"ds_read_b128 v[28:31], v{vL16} offset:3072")
    A("s_waitcnt lgkmcnt(0)")
    A("v_pk_add_f32 v[16:17], v[16:17], v[20:21]")
    A("v_pk_add_f32 v[18:19], v[18:19], v[22:23]")
    A("v_pk_add_f32 v[24:25], v[24:25], v[28:29]")
    A("v_pk_add_f32 v[26:27], v[26:27], v[30:31]")
    A("v_cvt_pk_bf16_f32 v8, v16, v17")
    A("v_cvt_pk_bf16_f32 v9, v18, v19")
    A("v_cvt_pk_bf16_f32 v10, v24, v25")
    A("v_cvt_pk_bf16_f32 v11, v26, v27")
    A(f"s_cmp_eq_u32 s{sU_}, 1")
    A(f"s_cselect_b32 s{sT1}, 32, 64")
    A(f"v_cmp_gt_u32 vcc, s{sT1}, v{vLane}")
    A("s_nop 1")
    A("v_cndmask_b32 v10, 0, v10, vcc")
    A("v_cndmask_b32 v11, 0, v11, vcc")
    A(f"s_lshl_b32 s{sT1}, s{sMT}, 10")
    A(f"buffer_store_dwordx4 v[8:11], v{vL16}, {s(SRD_KVF,4)}, s{sT1} offen sc1")
    A(f"s_lshl_b32 s{sT1}, s{sMT}, 2")
    A(f"s_add_u32 s{sT1}, s{sT1}, {F_F}")
    A("s_waitcnt vmcnt(0)")
    flag_store(A, sT1)
    A.label(done)
```

```python
import sys, argparse
sys.path.insert(0, "gen")
from common import *
import q1, q2

PROF_OFF = 0x4000000
DBG = None


class Stamp:
    def __init__(self, enable, skip=()):
        self.enable = enable
        self.skip = set(skip)
    def __call__(self, A, idx):
        if not self.enable or idx in self.skip:
            return
        if DBG is not None and idx == 9:
            return
        if DBG is not None and idx == 0:
            self.real(A, 9)
        A("s_memtime s[96:97]")
        A("s_waitcnt lgkmcnt(0)")
        A(f"s_mov_b32 s{84+idx}, s96")
    def real(self, A, idx):
        A("s_memrealtime s[96:97]")
        A("s_waitcnt lgkmcnt(0)")
        A(f"s_mov_b32 s{84+idx}, s96")
    def flush(self, A, n, sws):
        if not self.enable:
            return
        if DBG is not None:
            wg, wv = DBG
            skip = A.new_label("nodbg")
            A("s_memrealtime s[96:97]")
            A("s_waitcnt lgkmcnt(0)")
            A("s_sub_u32 s93, s96, s93")
            A("s_load_dwordx2 s[16:17], s[0:1], 64")
            A(f"s_cmp_lg_u32 s2, {wg}")
            A(f"s_cbranch_scc1 {skip}")
            A(f"s_cmp_lg_u32 s{q1.sW}, {wv}")
            A(f"s_cbranch_scc1 {skip}")
            A("s_waitcnt lgkmcnt(0)")
            A("s_and_b32 s17, s17, 0xffff")
            A("s_mov_b32 s18, 256")
            A("s_mov_b32 s19, 0x20000")
            A("v_mov_b32 v2, 0")
            for i in range(n):
                if i not in (0, 9):
                    A(f"s_sub_u32 s{84+i}, s{84+i}, s84")
            for i in range(1, n):
                A(f"v_mov_b32 v3, s{84+i}")
                A(f"buffer_store_dword v3, v2, s[16:19], 0 offen offset:{4*i}")
            A("s_waitcnt vmcnt(0)")
            A.label(skip)
            A("s_waitcnt lgkmcnt(0)")
            return
        srd(A, 16, sws, 0x100000, PROF_OFF)
        A("v_lshrrev_b32 v2, 6, v0")
        A("v_lshlrev_b32 v2, 6, v2")
        A("s_lshl_b32 s96, s2, 8")
        A("v_add_u32 v2, s96, v2")
        for i in range(n):
            A(f"v_mov_b32 v3, s{84+i}")
            A(f"buffer_store_dword v3, v2, s[16:19], 0 offen offset:{4*i}")
        A("s_memrealtime s[96:97]")
        A("s_waitcnt lgkmcnt(0)")
        A("v_mov_b32 v3, s96")
        A(f"buffer_store_dword v3, v2, s[16:19], 0 offen offset:52")
        A("s_waitcnt vmcnt(0)")


def kR(A, kern, stamp_en, pstamps):
    A(khead(kern))
    ex = "L_exit_" + kern
    if pstamps:
        s1 = Stamp(stamp_en, skip=())
        s2 = Stamp(stamp_en, skip=(8, 9, 10))
    else:
        s1 = Stamp(stamp_en, skip=(8, 9, 10))
        s2 = Stamp(stamp_en)
    side = []
    q1.prologue_common(A, ex, s1)
    labs = {vv: A.new_label("var" + vv) for vv in ("A0", "A1", "B0", "B1")}
    lb = A.new_label("typeB")
    lph2 = A.new_label("phase2")
    A(f"s_cmp_ge_u32 s{q1.sC}, 12")
    A(f"s_cbranch_scc1 {lb}")
    A(f"s_cmp_eq_u32 s{q1.sCH}, 1")
    A(f"s_cbranch_scc1 {labs['A1']}")
    A(f"s_branch {labs['A0']}")
    A.label(lb)
    A(f"s_cmp_eq_u32 s{q1.sCH}, 1")
    A(f"s_cbranch_scc1 {labs['B1']}")
    A(f"s_branch {labs['B0']}")
    for vv in ("A0", "A1", "B0", "B1"):
        A.label(labs[vv])
        y = q1.prologue_var(A, vv, s1)
        st = q1.loop(A, vv, s1, y, side)
        s1(A, 2)
        q1.fold(A, vv, st)
        q1.epilogue(A, vv, st, s1)
        A(f"s_branch {lph2}")
        for e in side:
            e(A)
        side.clear()
    A.label(lph2)
    lred = A.new_label("reducer")
    lend = A.new_label("end")
    A(f"s_cmp_eq_u32 s{q1.sNT}, 7")
    A(f"s_cbranch_scc1 {lred}")
    q2.phase2(A, s2, side)
    A(f"s_branch {lend}")
    for e in side:
        e(A)
    side.clear()
    A.label(lred)
    q2.reducer(A, s2)
    A.label(lend)
    s2(A, 11)
    s2.flush(A, 12, q1.sWS)
    A.label(ex)
    A("s_endpgm")
    A.label("L_codeend")
    A("s_endpgm")


def main():
    global DBG
    ap = argparse.ArgumentParser()
    ap.add_argument("--out", default="cdna_kernels/" + NAME + ".s")
    ap.add_argument("--prof", action="store_true")
    ap.add_argument("--pstamps", action="store_true")
    ap.add_argument("--opt", default="")
    ap.add_argument("--lp1", default="")
    ap.add_argument("--lp2", default="")
    ap.add_argument("--dma", default="")
    ap.add_argument("--cap", type=int, default=0)
    ap.add_argument("--p2", default="", help="key=val,... for q2.OPT")
    ap.add_argument("--dbg", default="")
    args = ap.parse_args()
    if args.dbg:
        DBG = tuple(int(z) for z in args.dbg.split(","))
        args.prof = True
    for o in args.opt.split(","):
        if o:
            assert o in q1.OPT, o
            q1.OPT[o] = True
    for kv in args.p2.split(","):
        if kv:
            k, z = kv.split("=")
            q2.OPT[k] = int(z)
    if args.lp1: q1.OPTS["lp1"] = [int(c) for c in args.lp1]
    if args.lp2: q1.OPTS["lp2"] = [int(c) for c in args.lp2]
    if args.cap: q1.OPTS["cap"] = args.cap
    if args.dma:
        a_, b_, c_, d_ = args.dma.split(",")
        h = lambda z: [int(c, 16) for c in z]
        q1.DMA1[0], q1.DMA2[0], q1.DMA1[1], q1.DMA2[1] = h(a_), h(b_), h(c_), h(d_)
    A = Asm()
    kn = NAME + "_kernel"
    hdr = f"; @launch grid=(256,1,1) block=(256,1,1) lds=163840"
    A('.amdgcn_target "amdgcn-amd-amdhsa--gfx950"')
    A(".text")
    kR(A, kn, args.prof, args.pstamps)
    txt = hdr + "\n" + A.text() + '.section .rodata,"a"\n.p2align 6\n' + desc(kn)
    open(args.out, "w").write(txt)
    print("wrote", args.out, len(txt), "bytes")


main()
```

```python
import re
from common import v, a, s, srd, desc, khead, NAME

REG = re.compile(r"^(-|\|)?([vas])(\d+|\[(\d+):(\d+)\])\|?$")
TRANS = ("v_exp_f32", "v_rcp_f32", "v_sqrt_f32", "v_rsq_f32", "v_log_f32")


def regs_of(tok):
    tok = tok.strip()
    if tok in ("vcc", "vcc_lo", "vcc_hi"):
        return [("s", "vcc")]
    if tok == "m0":
        return [("s", "m0")]
    if tok.startswith("exec"):
        return [("s", "exec")]
    m = REG.match(tok)
    if not m:
        return []
    k = m.group(2)
    if m.group(4) is not None:
        return [(k, i) for i in range(int(m.group(4)), int(m.group(5)) + 1)]
    return [(k, int(m.group(3)))]


class Ins:
    __slots__ = ("text", "op", "defs", "uses", "cls", "passes", "srcC", "srcAB", "lds", "tag", "wide", "dpp")

    def __init__(self, text, tag=None):
        self.text = text
        self.tag = tag
        t = text.strip()
        sp = t.split(None, 1)
        op = sp[0]
        self.op = op
        rest = sp[1] if len(sp) > 1 else ""
        toks = [x.strip() for x in rest.split(",")] if rest else []
        mods = ""
        if toks:
            z = toks[-1].split(None, 1)
            toks[-1] = z[0]
            mods = z[1] if len(z) > 1 else ""
        R = [regs_of(x) for x in toks]
        self.defs, self.uses = [], []
        self.passes = 0
        self.srcC, self.srcAB = [], []
        self.lds = False
        self.wide = False
        self.dpp = ("quad_perm" in mods) or ("row_" in mods)
        flat = lambda L: [r for x in L for r in x]
        if op.startswith("v_mfma"):
            self.cls = "mfma"
            self.passes = 8 if "32x32x16" in op else 4
            self.defs = R[0]; self.srcAB = R[1] + R[2]; self.srcC = R[3]
            self.uses = self.srcAB + self.srcC
        elif op.startswith("v_"):
            self.cls = "valu"
            if op.startswith("v_cmp"):
                self.defs = R[0]; self.uses = flat(R[1:])
            elif op.startswith("v_permlane"):
                self.defs = R[0] + R[1]; self.uses = R[0] + R[1]
            elif op.startswith(("v_fmac", "v_mac", "v_dot2c")):
                self.defs = R[0]; self.uses = flat(R)
            else:
                self.defs = R[0]; self.uses = flat(R[1:])
        elif op.startswith("ds_read"):
            self.cls = "dsr"; self.defs = R[0]; self.uses = flat(R[1:])
        elif op.startswith("ds_write"):
            self.cls = "dsw"; self.uses = flat(R)
        elif op.startswith("buffer_load"):
            if " lds" in (" " + mods):
                self.cls = "vml"; self.lds = True; self.uses = flat(R) + [("s", "m0")]
            else:
                self.cls = "vml"; self.defs = R[0]; self.uses = flat(R[1:])
        elif op.startswith("buffer_store"):
            self.cls = "vms"; self.uses = flat(R)
            self.wide = ("x4" in op) or ("x3" in op)
            self.srcC = R[0]
        elif op.startswith(("s_load", "s_memtime", "s_memrealtime")):
            self.cls = "smem"; self.defs = R[0]; self.uses = flat(R[1:])
        elif op in ("s_waitcnt", "s_nop", "s_barrier", "s_branch", "s_endpgm", "s_setprio", "s_sleep") or op.startswith("s_cbranch"):
            self.cls = "ctl"
        elif op.startswith("s_cmp") or op.startswith("s_bitcmp"):
            self.cls = "salu"; self.uses = flat(R)
        elif op.startswith("s_"):
            self.cls = "salu"; self.defs = R[0]; self.uses = flat(R[1:])
        else:
            raise ValueError("unknown instruction: " + text)


class Prog:
    def __init__(self):
        self.items = []
        self.uid = Prog.UID
        self.tagmap = {}
    UID = [0]

    def __call__(self, text, tag=None):
        for line in text.split("\n"):
            line = line.strip()
            if not line:
                continue
            tg = tag
            if "  ##" in line:
                line, tg = line.split("  ##")
                line = line.strip(); tg = tg.strip()
            if line.startswith("@wait"):
                p = line.split()
                self.items.append(("@wait", p[1], len(p) > 2))
            else:
                self.items.append((line, tg))

    def ext(self, lst):
        for x in lst:
            self(x)

    def label(self, name):
        self.items.append((name + ":", None))

    def new_label(self, base):
        Prog.UID[0] += 1
        return f"L_{base}_{Prog.UID[0]}"

    def finalize(self, report=None, fresh=True):
        out = []
        vmq, lgq = [], []
        vdone = ldone = 0
        smem = False
        hist = []
        state = 0
        nops = []

        def emit(text, ins=None, states=1):
            nonlocal state
            out.append(text)
            state += states
            if ins is not None:
                hist.append((state, ins))
                if len(hist) > 40:
                    hist.pop(0)

        def need_states(c):
            req = 0
            cu, cd = set(c.uses), set(c.defs)
            for st, p in hist:
                d = state - st
                if d >= 20:
                    continue
                n = 0
                pd = set(p.defs)
                if p.cls == "valu":
                    vg = {r for r in pd if r[0] in "va"}
                    sg = {r for r in pd if r[0] == "s"}
                    if c.cls == "mfma" and vg & cu:
                        n = max(n, 2)
                    if c.cls == "valu" and vg & cu:
                        if c.dpp or c.op.startswith("v_permlane"):
                            n = max(n, 2)
                        if c.op.startswith(("v_readfirstlane", "v_readlane")):
                            n = max(n, 1)
                        if p.op in TRANS:
                            n = max(n, 1)
                    if sg & cu:
                        if c.cls == "valu":
                            n = max(n, 2)
                        if c.cls in ("vml", "vms"):
                            n = max(n, 5)
                elif p.cls == "mfma":
                    big = p.passes == 8
                    if c.cls == "mfma":
                        if pd & set(c.srcAB):
                            n = max(n, 12 if big else 8)
                        if pd & set(c.srcC):
                            if not (c.srcC == p.defs and c.passes == p.passes):
                                n = max(n, 10 if big else 6)
                        elif pd & cd:
                            n = max(n, 10 if big else 6)
                    elif c.cls in ("valu", "vml", "vms", "dsr", "dsw"):
                        if pd & (cu | cd):
                            n = max(n, 12 if big else 8)
                        if c.cls == "valu" and set(p.srcC) & cd:
                            n = max(n, 7 if big else 3)
                elif p.cls == "salu":
                    if ("s", "m0") in pd and c.lds:
                        n = max(n, 1)
                elif p.cls == "vms" and p.wide:
                    if set(p.srcC) & cd:
                        n = max(n, 2 if c.cls == "valu" else 1)
                req = max(req, n - d)
            return req

        for it in self.items:
            if it[0] == "@wait":
                _, tag, lg0 = it
                idx = [i for i, e in enumerate(vmq) if e[0] == tag]
                assert idx, "no such tag " + tag
                n = len(vmq) - 1 - idx[-1]
                w = []
                if idx[-1] >= vdone:
                    w.append(f"vmcnt({min(n, 63)})")
                    vdone = max(vdone, len(vmq) - min(n, 63))
                if lg0:
                    w.append("lgkmcnt(0)")
                    ldone = len(lgq); smem = False
                if w:
                    emit("s_waitcnt " + " ".join(w))
                continue
            text, tag = it
            if text.endswith(":") or text.startswith((".", ";")):
                out.append(text)
                continue
            c = Ins(text, tag)
            if c.op == "s_waitcnt":
                m = re.search(r"vmcnt\((\d+)\)", text)
                if m:
                    vdone = max(vdone, len(vmq) - int(m.group(1)))
                m = re.search(r"lgkmcnt\((\d+)\)", text)
                if m:
                    n = int(m.group(1))
                    if n == 0:
                        smem = False
                    if not smem:
                        ldone = max(ldone, len(lgq) - n)
                emit(text)
                continue
            if c.op == "s_nop":
                emit(text, None, int(text.split()[1]) + 1)
                continue
            touch = set(c.uses) | set(c.defs)
            w = []
            vi = [i for i in range(vdone, len(vmq)) if vmq[i][1] & touch]
            if vi:
                n = min(len(vmq) - 1 - vi[-1], 63)
                w.append(f"vmcnt({n})")
                vdone = max(vdone, len(vmq) - n)
            li = [i for i in range(ldone, len(lgq)) if lgq[i][1] & touch]
            if li:
                n = 0 if smem else min(len(lgq) - 1 - li[-1], 15)
                w.append(f"lgkmcnt({n})")
                ldone = max(ldone, len(lgq) - n)
                if n == 0:
                    smem = False
            if w:
                emit("s_waitcnt " + " ".join(w))
            r = need_states(c)
            if r > 0:
                nops.append((len(out), r, text))
                while r > 0:
                    k = min(r, 16)
                    emit(f"s_nop {k-1}", None, k)
                    r -= k
            emit(text, c)
            if c.cls in ("vml", "vms"):
                vmq.append((tag, set(c.defs)))
            elif c.cls in ("dsr", "dsw"):
                lgq.append((tag, set(c.defs)))
            elif c.cls == "smem":
                smem = True
                lgq.append((tag, set(c.defs)))
        if report is not None:
            report.extend(nops)
        return out


def text_of(lines):
    out = []
    for l in lines:
        if l.endswith(":") or l.startswith((".", ";")):
            out.append(l)
        else:
            out.append("    " + l)
    return "\n".join(out) + "\n"


def nins(item):
    if not item:
        return 0
    return len([x for x in item.split("\n") if x.strip() and not x.strip().startswith("@")])


class Weave:
    def __init__(self):
        self.bb = []
        self.cap = []
        self.pre = []
        self.fill = []
        self.dma = []
        self.used = []

    def add(self, m, cap):
        self.bb.append(m); self.cap.append(cap); self.pre.append([]); self.fill.append([]); self.dma.append(None)
        self.used.append(0)
        return len(self.bb) - 1

    def n(self):
        return len(self.bb)

    def before(self, i, item):
        self.pre[i].append(item)

    def pin(self, i, item):
        if not item:
            return
        self.fill[i].append(item); self.used[i] += nins(item)

    def plan(self, items, lo, counts):
        k = 0
        for i, c in enumerate(counts):
            for _ in range(c):
                if k < len(items):
                    self.pin(lo + i, items[k]); k += 1
        assert k == len(items), (k, len(items))

    def spread(self, items, lo, hi):
        items = [x for x in items if x]
        if not items:
            return
        rem = [max(0, self.cap[i] - self.used[i]) for i in range(lo, hi)]
        tot = sum(rem)
        need = sum(nins(x) for x in items)
        if tot == 0:
            rem = [1] * (hi - lo); tot = hi - lo
        scale = need / tot
        cum = 0.0; placed = 0; k = 0
        for i in range(lo, hi):
            cum += rem[i - lo] * scale
            while k < len(items) and placed + nins(items[k]) / 2.0 <= cum + 1e-9:
                self.pin(i, items[k]); placed += nins(items[k]); k += 1
        while k < len(items):
            self.pin(hi - 1, items[k]); k += 1

    def put_dma(self, units, lo, hi):
        if not units:
            return
        cands = [i for i in range(lo, hi) if self.dma[i] is None and self.cap[i] >= 4]
        assert len(cands) >= len(units), (len(cands), len(units), lo, hi)
        n = len(units)
        for k, u in enumerate(units):
            i = cands[(2 * k + 1) * len(cands) // (2 * n)] if n < len(cands) else cands[k]
            self.dma[i] = u
            self.used[i] += nins(u[0]) + nins(u[1]) + nins(u[2])

    def emit(self, A):
        for i in range(self.n()):
            for x in self.pre[i]:
                A(x)
            if self.bb[i]:
                A(self.bb[i])
            body = list(self.fill[i])
            if self.dma[i] is not None:
                p, l, post = self.dma[i]
                body = ([p] if p else []) + body + [l] + ([post] if post else [])
            for x in body:
                A(x)

    def load_report(self):
        return "".join("%x" % min(u, 15) for u in self.used)
```

```python
from tlib import *

SLOT, UOFF, KVO = 28928, 14464, 16384
SCR = 4 * SLOT
RSTD = SCR
CSX = SCR + 512
RPS = SCR + 512 + 5120
KVX = RPS + 8192
KFX = KVX + 16384
LDS_BYTES = KFX + 2048
assert RPS % 128 == 0 and LDS_BYTES <= 163840

ACT_OFF = 0
ACT_BYTES = 64 * 144 * 1024
KVP_OFF = 0x1000000
KVP_BYTES = 16 * 16 * 4096
FLG_OFF = 0x1500000
FLG_BYTES = 0x10000
F_A = 0x0000
F_O = 0x1000
F_K = 0x2000
EPOCH = 0x3800
F_P = 0x4000
STAT = 0x6000
W2F_OFF = 0x1600000
W2F_BYTES = 1008 * 2048

sX, sQKV, sG, sU, sWS = 4, 6, 8, 10, 12
SRD_FLG = 8
sMT, sNT = 14, 15
SRD_GU, SRD_QKV, SRD_X, SRD_ACT, SRD_KVP = 16, 20, 24, 28, 32
sR, sC, sW = 36, 37, 38
sMW, sMX, sMQ = 39, 40, 41
sOffW, sOffQ, sOffX = 42, 43, 44
sFo = 45
sMQ1 = 46
sMask = 47
sT0, sT1, sT2, sT3 = 48, 49, 50, 51
SRD_RP = 52
sL28 = 52
sLO = 54
sRPo, sRPk = 64, 65
sGid = 66
sTag = 75
SRD_W2 = 76
sW2cur, sW2lo, sW2hi, sW2o = 80, 81, 82, 83
sWOp, sOUTp = 98, 100

vTid, vLane = 0, 1
vDW = 8
vL16 = 15
vDX = 16
vDQ = 20
vW2a, vW2b = 21, 28
vST = 22
vEpoch, vPollK, vPollA = 26, 27, 29
vPF = 30
ACCF = 32
ACCK, ACCV, ACCQ = 144, 160, 176
vXa, vKa = 32, 40
vSD, vRP = 48, 56
vQ = 64
vRPv, vRPr, vSTv = 76, 77, 79
vSTo = 80
vWa = 192
vQa = 200
vM = 204
vCF = 208
vCS = 216
vR2 = 224
vCSw, vCSr, vPollW = 225, 226, 227
vE = 228
PK = 240
vPB, vPC, vPW = 248, 249, 250
aX = 0
aWf = 112
aCS = 168
aQf = 196
aCSQ = 212
aSEL = 216

OPT = {}
PAR = {"cap": 6, "capA": 7,
       "sts": 2, "rpl": 2, "rps": 3, "pubP": 14, "ldS": 18, "chkS": 27, "kv0": 28, "kvw": 39,
       "pubK": 47, "polK": 55, "polW": 31, "chkW": 39, "w2a": 40,
       "pfB": 6, "pfC": 31, "pfW": 35, "f0": 0, "fstep": 4}


def accF(t):
    return ACCF + 16 * t


def wf(b, t):
    return aWf + 28 * b + 4 * t


def kf(n, t):
    return aWf + 8 * (n % 4) + 4 * t


def qf(i):
    return aQf + 4 * (i % 4)


def xf(j, p):
    return aX + 4 * (4 * j + p)


def w2reg(q):
    if q < 4:
        return lambda ns: a(220 + 8 * q + 4 * ns, 4)
    if q < 11:
        return lambda ns: a(aWf + 8 * (q - 4) + 4 * ns, 4)
    if q < 14:
        return lambda ns: a(aCS + 8 * (q - 11) + 4 * ns, 4)
    if q < 28:
        return lambda ns: a(8 * (q - 14) + 4 * ns, 4)
    if q < 31:
        return lambda ns: a(192 + 8 * (q - 28) + 4 * ns, 4)
    if q < 35:
        return lambda ns: v(ACCK + 8 * (q - 31) + 4 * ns, 4)
    return lambda ns: a(216 if ns == 0 else 252, 4)


def readsA(n):
    j, p = divmod(n, 4)
    sl = j % 4
    st, lo = sl >> 1, (sl & 1) * SLOT
    R = [f"ds_read_b128 {a(xf(j,p),4)}, v{vXa+4*st+p} offset:{lo}"]
    for t in range(2):
        for h in range(2):
            R.append(f"ds_read_b64_tr_b16 {a(kf(n,t)+2*h,2)}, v{vKa+4*st+p} offset:{lo+1024*t+256*h}")
    return R


def readsB(n):
    g, p = divmod(n, 4)
    sl = g % 4
    st, lo = sl >> 1, (sl & 1) * SLOT
    R = []
    for t in range(7):
        for h in range(2):
            R.append(f"ds_read_b64_tr_b16 {a(wf(p&1,t)+2*h,2)}, v{vWa+4*st+p} offset:{lo+32*t+896*h}")
    return R


def readsC(i):
    jj, p = divmod(i, 4)
    return [f"ds_read_b64_tr_b16 {a(qf(i)+2*h,2)}, v{vQa+p} offset:{4096*jj+256*h}" for h in range(2)]


def mf(D, A_, B_, first):
    return f"v_mfma_f32_32x32x16_bf16 {D}, {A_}, {B_}, {'0' if first else D}"


def m16(reg, frag, first):
    D = a(reg, 4)
    return f"v_mfma_f32_16x16x32_bf16 {D}, {a(aSEL,4)}, {frag}, {'0' if first else D}"


def group_units(g):
    base = (g % 4) * SLOT
    U = []
    if g < 7:
        X = []
        for uu in range(4):
            post = f"s_add_u32 s{sOffX}, s{sOffX}, 128" if (uu == 3 and g < 6) else ""
            X.append((f"s_add_u32 m0, s{sMX}, {base+1024*uu}",
                      f"buffer_load_dwordx4 v{vDX+uu}, {s(SRD_X,4)}, s{sOffX} offen lds  ##G{g}", post))
        K = []
        for t in range(2):
            post = ""
            if t == 1:
                post = (f"s_add_u32 s{sOffQ}, s{sOffQ}, {64*2688}" if g < 6 else
                        f"s_sub_u32 s{sOffQ}, s{sOffQ}, {6*64*2688}")
            K.append((f"s_add_u32 m0, s{sMQ}, {base+KVO+1024*t-896*(t+1)}",
                      f"buffer_load_dwordx4 v{vDQ}, {s(SRD_QKV,4)}, s{sOffQ} offen offset:{896*(t+1)} lds  ##G{g}", post))
        U = [X[0], K[0], X[1], X[2], K[1], X[3]]
    elif g < 14:
        for u in range(7):
            post = f"s_add_u32 s{sOffW}, s{sOffW}, {64*3584}" if (u == 6 and g < 13) else ""
            U.append((f"s_add_u32 m0, s{sMW}, {base+1024*u}",
                      f"buffer_load_dwordx4 v{vDW+u}, {s(SRD_GU,4)}, s{sOffW} offen lds  ##G{g}", post))
    else:
        for i in range(7):
            post = f"s_add_u32 s{sOffQ}, s{sOffQ}, {64*2688}" if i < 6 else ""
            U.append((f"s_add_u32 m0, s{sMQ1}, {base+4096*i}",
                      f"buffer_load_dwordx4 v{vDQ}, {s(SRD_QKV,4)}, s{sOffQ} offen lds  ##G{g}", post))
    return U


def unit_item(u):
    return "\n".join(x for x in u if x)


def emit_units(A, U):
    for u in U:
        A(unit_item(u))


def prologue(A, exit_label, stamp):
    A(f"s_cmp_ge_u32 s2, 256")
    A(f"s_cbranch_scc1 {exit_label}")
    A(f"s_load_dwordx4 {s(sX,4)}, s[0:1], 0")
    A(f"s_load_dwordx4 {s(sG,4)}, s[0:1], 32")
    A(f"s_load_dwordx2 {s(sWS,2)}, s[0:1], 72")
    A(f"s_load_dwordx4 {s(SRD_W2,4)}, s[0:1], 48")
    A(f"s_load_dwordx2 {s(sWOp,2)}, s[0:1], 16")
    A(f"v_and_b32 v{vLane}, 63, v{vTid}")
    stamp(A, 0)
    A(f"v_lshrrev_b32 v2, 6, v{vTid}")
    A(f"s_and_b32 s{sT0}, s2, 1")
    A(f"s_lshl_b32 s{sT0}, s{sT0}, 3")
    A(f"s_bfe_u32 s{sT1}, s2, 0x30003")
    A(f"s_add_u32 s{sR}, s{sT0}, s{sT1}")
    A(f"v_readfirstlane_b32 s{sW}, v2")
    A(f"s_bfe_u32 s{sT0}, s2, 0x20001")
    A(f"s_lshl_b32 s{sT0}, s{sT0}, 2")
    A(f"s_lshr_b32 s{sT2}, s2, 6")
    A(f"s_add_u32 s{sC}, s{sT0}, s{sT2}")
    A(f"s_mov_b32 s{sMask}, 0xffff0000")
    task_setup_pre(A)
    A(f"v_lshrrev_b32 v6, 3, v{vLane}")
    A(f"v_mul_u32_u24 v6, 896, v6")
    A(f"s_lshl_b32 s{sT0}, s{sR}, 2")
    A(f"s_add_u32 s{sT0}, s{sT0}, s{sW}")
    A(f"s_mul_i32 s{sT0}, s{sT0}, {32*896}")
    A(f"v_add_u32 v6, s{sT0}, v6")
    A(f"v_lshrrev_b32 v7, 4, v{vLane}")
    A(f"v_xor_b32 v7, v7, v{vLane}")
    A(f"v_and_b32 v7, 7, v7")
    A(f"v_lshlrev_b32 v7, 4, v7")
    for uu in range(4):
        d = vDX + uu
        if uu & 1:
            A(f"v_xor_b32 v{d}, 64, v7")
            A(f"v_add_u32 v{d}, v{d}, v6")
        else:
            A(f"v_add_u32 v{d}, v7, v6")
        if uu:
            A(f"v_add_u32 v{d}, {uu*8*896}, v{d}")
    A(f"v_lshrrev_b32 v2, 2, v{vLane}")
    A(f"v_mul_u32_u24 v2, 2688, v2")
    A(f"v_and_b32 v3, 3, v{vLane}")
    A(f"v_lshl_add_u32 v2, v3, 4, v2")
    A(f"s_mul_i32 s{sT0}, s{sC}, 56")
    A(f"v_add_u32 v{vDQ}, s{sT0}, v2")
    A(f"s_lshr_b32 s{sT0}, s{sW}, 1")
    A(f"s_and_b32 s{sT1}, s{sW}, 1")
    A(f"s_mul_i32 s{sMW}, s{sT0}, {UOFF}")
    A(f"s_mul_i32 s{sT2}, s{sT1}, 7168")
    A(f"s_add_u32 s{sMW}, s{sMW}, s{sT2}")
    A(f"s_lshl_b32 s{sMX}, s{sW}, 12")
    A(f"s_lshl_b32 s{sMQ}, s{sW}, 11")
    A(f"s_lshl_b32 s{sMQ1}, s{sW}, 10")
    A(f"s_mul_i32 s{sOffW}, s{sT1}, {32*3584}")
    A(f"s_mul_i32 s{sT2}, s{sC}, 224")
    A(f"s_add_u32 s{sOffW}, s{sOffW}, s{sT2}")
    A(f"s_mov_b32 s{sOffX}, 0")
    A(f"s_mul_i32 s{sOffQ}, s{sW}, {16*2688}")
    A(f"v_lshlrev_b32 v{vL16}, 4, v{vLane}")
    pfa = pf_setup_a(A)
    stamp(A, ("p", 0))
    A("s_waitcnt lgkmcnt(0)")
    srd(A, SRD_X, sX, 2048 * 896)
    st_issue(A)
    srd(A, SRD_QKV, sQKV, 448 * 2688)
    emit_units(A, group_units(0))
    A(f"s_lshr_b32 s{sT0}, s{sW}, 1")
    A(f"s_cmp_eq_u32 s{sT0}, 1")
    A(f"s_cselect_b32 s{SRD_GU}, s{sU}, s{sG}")
    A(f"s_cselect_b32 s{SRD_GU+1}, s{sU+1}, s{sG+1}")
    A(f"s_and_b32 s{SRD_GU+1}, s{SRD_GU+1}, 0xffff")
    A(f"s_mov_b32 s{SRD_GU+2}, {448*3584}")
    A(f"s_mov_b32 s{SRD_GU+3}, 0x20000")
    srd(A, SRD_FLG, sWS, FLG_BYTES, FLG_OFF)
    A(f"v_mov_b32 v2, {EPOCH}")
    A(f"buffer_load_dword v{vEpoch}, v2, {s(SRD_FLG,4)}, 0 offen sc1")
    A(f"s_cmp_eq_u32 s{sRPk}, 1")
    A(f"s_cselect_b32 s{SRD_RP}, s{SRD_W2}, s{sWOp}")
    A(f"s_cselect_b32 s{SRD_RP+1}, s{SRD_W2+1}, s{sWOp+1}")
    A(f"s_mov_b32 s{SRD_RP+2}, {448*896}")
    A(f"s_cselect_b32 s{SRD_RP+2}, {1792*896}, s{SRD_RP+2}")
    A(f"s_and_b32 s{SRD_RP+1}, s{SRD_RP+1}, 0xffff")
    A(f"s_mov_b32 s{SRD_RP+3}, 0x20000")
    rp_issue(A)
    stamp(A, ("p", 1))
    emit_units(A, group_units(1))
    for x in pfa:
        A(x)
    stamp(A, ("p", 2))
    A(f"s_mov_b32 s{sOUTp}, s{SRD_W2+2}")
    A(f"s_mov_b32 s{sOUTp+1}, s{SRD_W2+3}")
    srd(A, SRD_W2, sWS, W2F_BYTES, W2F_OFF)
    srd(A, SRD_ACT, sWS, ACT_BYTES, ACT_OFF)
    srd(A, SRD_KVP, sWS, KVP_BYTES, KVP_OFF)
    A(f"s_and_b32 s{sT0}, s2, 7")
    A(f"s_lshl_b32 s{sT0}, s{sT0}, 2")
    A(f"s_bfe_u32 s{sT1}, s2, 0x20003")
    A(f"s_add_u32 s{sMT}, s{sT0}, s{sT1}")
    A(f"s_lshr_b32 s{sNT}, s2, 5")
    task_setup_post(A)
    for u in range(7):
        d = vDW + u
        A(f"v_add_u32 v3, {64*u}, v{vLane}")
        A(f"v_mul_u32_u24 v4, 4682, v3")
        A(f"v_lshrrev_b32 v4, 16, v4")
        A(f"v_mul_u32_u24 v5, 14, v4")
        A(f"v_sub_u32 v5, v3, v5")
        A(f"v_mul_u32_u24 v4, 3584, v4")
        A(f"v_lshl_add_u32 v{d}, v5, 4, v4")
    for q in range(448):
        assert (q * 4682) >> 16 == q // 14
    A(f"v_lshrrev_b32 v2, 5, v{vLane}")
    A(f"v_lshlrev_b32 v3, 3, v2")
    A(f"v_bfe_u32 v5, v{vLane}, 2, 2")
    A(f"v_add_u32 v3, v3, v5")
    A(f"v_bfe_u32 v4, v{vLane}, 4, 1")
    A(f"v_and_b32 v5, 3, v{vLane}")
    A(f"v_lshlrev_b32 v5, 3, v5")
    A(f"v_mul_u32_u24 v6, 224, v3")
    A(f"v_mul_u32_u24 v7, {UOFF}, v4")
    A(f"v_add3_u32 v6, v6, v7, v5")
    A(f"v_lshlrev_b32 v7, 6, v3")
    A(f"v_lshl_add_u32 v7, v4, 5, v7")
    A(f"v_add_u32 v7, v7, v5")
    A(f"v_and_b32 v3, 31, v{vLane}")
    A(f"v_bfe_u32 v4, v{vLane}, 1, 3")
    A(f"v_lshlrev_b32 v3, 7, v3")
    for p in range(4):
        A(f"s_add_u32 s{sT0}, s{sW}, {p}")
        A(f"s_and_b32 s{sT0}, s{sT0}, 3")
        A(f"s_mul_i32 s{sT1}, s{sT0}, 3584")
        A(f"v_add_u32 v{vWa+p}, s{sT1}, v6")
        A(f"v_add_u32 v{vWa+4+p}, {2*SLOT}, v{vWa+p}")
        A(f"s_lshl_b32 s{sT1}, s{sT0}, 11")
        A(f"s_add_u32 s{sT1}, s{sT1}, {KVO}")
        A(f"v_add_u32 v{vKa+p}, s{sT1}, v7")
        A(f"v_add_u32 v{vKa+4+p}, {2*SLOT}, v{vKa+p}")
        A(f"s_lshl_b32 s{sT1}, s{sT0}, 10")
        A(f"s_add_u32 s{sT1}, s{sT1}, {(14 % 4) * SLOT}")
        A(f"v_add_u32 v{vQa+p}, s{sT1}, v7")
        A(f"s_lshl_b32 s{sT0}, s{sT0}, 1")
        A(f"v_add_u32 v5, s{sT0}, v2")
        A(f"v_xor_b32 v5, v5, v4")
        A(f"v_lshl_add_u32 v5, v5, 4, v3")
        A(f"v_add_u32 v{vXa+p}, s{sMX}, v5")
        A(f"v_add_u32 v{vXa+4+p}, {2*SLOT}, v{vXa+p}")
    A(f"v_lshrrev_b32 v2, 2, v{vLane}")
    A(f"v_lshrrev_b32 v3, 4, v{vLane}")
    A(f"v_xor_b32 v2, v2, v3")
    A(f"v_and_b32 v2, 1, v2")
    A(f"v_cmp_eq_u32 vcc, 0, v2")
    A(f"v_mov_b32 v3, 0x3f803f80")
    A(f"v_mov_b32 v4, 0")
    A(f"v_cndmask_b32 v3, v4, v3, vcc")
    for i in range(4):
        A(f"v_accvgpr_write_b32 a{aSEL+i}, v3")
    A(f"v_and_b32 v2, 31, v{vLane}")
    A(f"v_lshlrev_b32 v2, 4, v2")
    A(f"v_add_u32 v{vCSr}, {CSX}, v2")
    A(f"s_lshl_b32 s{sT0}, s{sW}, 2")
    A(f"v_add_u32 v{vCSw}, s{sT0}, v{vCSr}")
    A(f"s_lshr_b32 s{sT0}, s{sW}, 1")
    A(f"s_lshl_b32 s{sT0}, s{sT0}, 10")
    A(f"s_sub_u32 s{sT1}, 1024, s{sT0}")
    A(f"v_add_u32 v{vW2a}, s{sT0}, v{vL16}")
    A(f"v_add_u32 v{vW2b}, s{sT1}, v{vL16}")
    A(f"s_min_u32 s{sT0}, s{sNT}, 7")
    A(f"s_mul_i32 s{sT0}, s{sT0}, {144*2048}")
    A(f"s_mul_i32 s{sT1}, s{sW}, {28*2048}")
    A(f"s_add_u32 s{sW2lo}, s{sT0}, s{sT1}")
    A(f"s_add_u32 s{sW2hi}, s{sW2lo}, {28*2048}")
    A(f"s_lshl_b32 s{sT1}, s{sW}, 14")
    A(f"s_add_u32 s{sW2o}, s{sT0}, s{sT1}")
    A(f"s_add_u32 s{sW2o}, s{sW2o}, {112*2048}")
    A(f"s_lshl_b32 s{sT1}, s{sNT}, 13")
    A(f"s_cmp_eq_u32 s{sNT}, 7")
    A(f"s_cselect_b32 s{sT1}, 0, s{sT1}")
    A(f"s_add_u32 s{sW2cur}, s{sW2lo}, s{sT1}")
    poll_addr_w(A, vPollW, 2)
    poll_addr_k(A, vPollK)
    A(f"s_lshl_b32 s{sT0}, s{sR}, 2")
    A(f"s_add_u32 s{sT0}, s{sT0}, s{sW}")
    A(f"s_mul_i32 s{sT0}, s{sT0}, 144")
    A(f"s_mul_i32 s{sT1}, s{sC}, 7")
    A(f"s_add_u32 s{sT0}, s{sT0}, s{sT1}")
    A(f"s_lshl_b32 s{sFo}, s{sT0}, 10")
    pf_setup_b(A)
    A(f"v_cmp_gt_u32 {s(sLO,2)}, 32, v{vLane}")
    stamp(A, ("p", 3))
    for x in st_items():
        A(x)
    stamp(A, ("p", 4))


def pf_setup_a(A):
    if OPT.get("nopf"):
        return []
    A(f"s_lshr_b32 s{sT0}, s2, 3")
    A(f"s_lshl_b32 s{sT0}, s{sT0}, 2")
    A(f"s_add_u32 s{sT0}, s{sT0}, s{sW}")
    A(f"s_lshl_b32 s{sT1}, s{sT0}, 3")
    A(f"v_lshrrev_b32 v2, 3, v{vLane}")
    A(f"v_add_u32 v2, s{sT1}, v2")
    A(f"v_and_b32 v3, 7, v{vLane}")
    A(f"s_and_b32 s{sT1}, s2, 1")
    A(f"s_lshl_b32 s{sT1}, s{sT1}, 10")
    A(f"v_add_u32 v4, s{sT1}, v2")
    A(f"v_mul_u32_u24 v4, 896, v4")
    A(f"v_lshl_add_u32 v4, v3, 7, v4")
    A(f"v_mov_b32 v5, 0x40000000")
    A(f"v_subrev_u32 v6, 2, v3")
    A(f"v_cmp_gt_u32 vcc, 5, v6")
    A(f"v_cndmask_b32 v{vPF}, v5, v4, vcc")
    A(f"v_min_u32 v6, 2, v3")
    A(f"v_mul_u32_u24 v2, 3, v2")
    A(f"v_add_u32 v2, v2, v6")
    A(f"v_mul_u32_u24 v4, 10923, v2")
    A(f"v_lshrrev_b32 v4, 16, v4")
    A(f"v_mul_u32_u24 v6, 6, v4")
    A(f"v_sub_u32 v6, v2, v6")
    A(f"v_cmp_lt_u32 {s(sT2,2)}, 2, v6")
    A(f"v_add_u32 v4, 128, v4")
    A(f"v_mul_u32_u24 v4, 2688, v4")
    A(f"v_lshlrev_b32 v7, 7, v6")
    A(f"v_add_u32 v4, v4, v7")
    A(f"v_add_u32 v7, {896-384}, v4")
    A(f"v_cndmask_b32 v4, v4, v7, {s(sT2,2)}")
    A(f"s_bfe_u32 s{sT0}, s2, 0x20001")
    A(f"s_mul_i32 s{sT0}, s{sT0}, 224")
    A(f"s_add_u32 s{sT0}, s{sT0}, 896")
    A(f"s_and_b32 s{sT0}, s{sT0}, 0xffffff80")
    A(f"v_add_u32 v4, s{sT0}, v4")
    A(f"v_cndmask_b32 v4, v4, v5, vcc")
    A(f"v_cmp_gt_u32 vcc, 1920, v2")
    A(f"v_cndmask_b32 v{vPF+1}, v5, v4, vcc")
    for x in range(3072):
        assert (x * 10923) >> 16 == x // 6
    return [f"buffer_load_dword v{vPF}, v{vPF}, {s(SRD_X,4)}, 0 offen",
            f"buffer_load_dword v{vPF+1}, v{vPF+1}, {s(SRD_QKV,4)}, 0 offen"]


def pf_setup_b(A):
    if OPT.get("nopf"):
        return
    A(f"s_lshr_b32 s{sT0}, s2, 3")
    A(f"s_lshl_b32 s{sT0}, s{sT0}, 1")
    A(f"s_and_b32 s{sT1}, s{sW}, 1")
    A(f"s_add_u32 s{sT0}, s{sT0}, s{sT1}")
    A(f"s_lshl_b32 s{sT0}, s{sT0}, 6")
    A(f"v_add_u32 v2, s{sT0}, v{vLane}")
    A(f"v_mul_u32_u24 v3, 9363, v2")
    A(f"v_lshrrev_b32 v3, 16, v3")
    A(f"v_mul_u32_u24 v4, 7, v3")
    A(f"v_sub_u32 v4, v2, v4")
    A(f"v_mul_u32_u24 v3, 3584, v3")
    A(f"v_lshl_add_u32 v3, v4, 7, v3")
    A(f"s_bfe_u32 s{sT0}, s2, 0x20001")
    A(f"s_mul_i32 s{sT1}, s{sT0}, 896")
    A(f"v_add_u32 v{vPB}, s{sT1}, v3")
    for x in range(4096):
        assert (x * 9363) >> 16 == x // 7
    A(f"s_lshr_b32 s{sT1}, s2, 3")
    A(f"s_lshl_b32 s{sT1}, s{sT1}, 2")
    A(f"s_add_u32 s{sT1}, s{sT1}, s{sW}")
    A(f"s_lshl_b32 s{sT1}, s{sT1}, 4")
    A(f"v_add_u32 v2, s{sT1}, v{vLane}")
    A(f"v_mul_u32_u24 v3, 21846, v2")
    A(f"v_lshrrev_b32 v3, 16, v3")
    A(f"v_mul_u32_u24 v4, 3, v3")
    A(f"v_sub_u32 v4, v2, v4")
    A(f"v_mul_u32_u24 v3, 2688, v3")
    A(f"v_lshl_add_u32 v3, v4, 7, v3")
    A(f"s_mul_i32 s{sT0}, s{sT0}, 224")
    A(f"s_and_b32 s{sT0}, s{sT0}, 0xffffff80")
    A(f"v_add_u32 v3, s{sT0}, v3")
    A(f"v_mov_b32 v4, 0x40000000")
    A(f"v_cmp_gt_u32 vcc, 16, v{vLane}")
    A(f"v_cndmask_b32 v{vPC}, v4, v3, vcc")
    for x in range(2200):
        assert (x * 21846) >> 16 == x // 3
    A(f"s_lshr_b32 s{sT0}, s2, 3")
    A(f"s_lshl_b32 s{sT0}, s{sT0}, 5")
    A(f"s_lshl_b32 s{sT1}, s{sW}, 3")
    A(f"s_add_u32 s{sT0}, s{sT0}, s{sT1}")
    A(f"s_lshl_b32 s{sT0}, s{sT0}, 11")
    A(f"v_lshlrev_b32 v2, 7, v{vLane}")
    A(f"v_add_u32 v{vPW}, s{sT0}, v2")


def rp_issue(A):
    A(f"s_lshl_b32 m0, s{sW}, 11")
    A(f"s_add_u32 m0, m0, {RPS}")
    l = f"buffer_load_dwordx4 v{vRPv}, {s(SRD_RP,4)}, s{sRPo} offen lds  ##rpl"
    A(l)
    A(f"s_add_u32 m0, m0, 1024")
    A(f"s_add_u32 s{sRPo}, s{sRPo}, 7168")
    A(l)


def st_issue(A):
    A(f"s_mul_i32 s{sT0}, s{sGid}, {2*896}")
    for o, r in ((0, vSD), (896, vSD + 4)):
        A(f"buffer_load_dwordx4 {v(r,4)}, v{vSTv}, {s(SRD_X,4)}, s{sT0} offen offset:{o}")


def task_setup_pre(A):
    A(f"s_lshl_b32 s{sGid}, s{sR}, 6")
    A(f"s_lshl_b32 s{sT0}, s{sC}, 2")
    A(f"s_add_u32 s{sGid}, s{sGid}, s{sT0}")
    A(f"s_add_u32 s{sGid}, s{sGid}, s{sW}")
    A(f"s_mul_i32 s{sT0}, s{sGid}, 7282")
    A(f"s_lshr_b32 s{sT0}, s{sT0}, 20")
    A(f"s_mul_i32 s{sT1}, s{sT0}, 144")
    A(f"s_sub_u32 s{sT1}, s{sGid}, s{sT1}")
    A(f"s_sub_u32 s{sT2}, s{sT1}, 112")
    A(f"s_lshr_b32 s{sT3}, s{sT2}, 1")
    A(f"s_mul_i32 s{sT3}, s{sT3}, 28")
    A(f"s_and_b32 s{sT2}, s{sT2}, 1")
    A(f"s_lshl_b32 s{sT2}, s{sT2}, 4")
    A(f"s_add_u32 s{sT3}, s{sT3}, s{sT2}")
    A(f"s_lshl_b32 s{sT2}, s{sT1}, 4")
    A(f"s_cmp_lt_u32 s{sT1}, 112")
    A(f"s_cselect_b32 s{sRPo}, s{sT2}, s{sT3}")
    A(f"s_cselect_b32 s{sRPk}, 1, 0")
    A(f"s_mul_i32 s{sRPo}, s{sRPo}, 896")
    t = vQ
    A(f"v_lshrrev_b32 v{t}, 3, v{vLane}")
    A(f"v_mul_u32_u24 v{t+1}, 896, v{t}")
    A(f"v_bfe_u32 v{t+2}, v{vLane}, 4, 1")
    A(f"v_lshlrev_b32 v{t+2}, 2, v{t+2}")
    A(f"v_and_b32 v{t+3}, 7, v{vLane}")
    A(f"v_xor_b32 v{t+3}, v{t+3}, v{t+2}")
    A(f"v_lshlrev_b32 v{t+3}, 4, v{t+3}")
    A(f"s_lshl_b32 s{sT0}, s{sT0}, 7")
    A(f"v_add3_u32 v{vRPv}, v{t+1}, v{t+3}, s{sT0}")
    A(f"v_lshlrev_b32 v{t+1}, 4, v{vLane}")
    A(f"v_mov_b32 v{t}, 0x40000000")
    A(f"v_cmp_gt_u32 vcc, 56, v{vLane}")
    A(f"v_cndmask_b32 v{vSTv}, v{t}, v{t+1}, vcc")


def task_setup_post(A):
    t = vQ
    A(f"v_lshrrev_b32 v{t}, 5, v{vLane}")
    A(f"v_lshlrev_b32 v{t}, 2, v{t}")
    A(f"v_bfe_u32 v{t+1}, v{vLane}, 2, 2")
    A(f"v_add_u32 v{t}, v{t}, v{t+1}")
    A(f"v_lshlrev_b32 v{t}, 7, v{t}")
    A(f"v_bfe_u32 v{t+1}, v{vLane}, 4, 1")
    A(f"v_lshlrev_b32 v{t+1}, 1, v{t+1}")
    A(f"v_bfe_u32 v{t+2}, v{vLane}, 1, 1")
    A(f"v_add_u32 v{t+1}, v{t+1}, v{t+2}")
    A(f"v_bfe_u32 v{t+2}, v{vLane}, 3, 1")
    A(f"v_lshlrev_b32 v{t+2}, 2, v{t+2}")
    A(f"v_xor_b32 v{t+1}, v{t+1}, v{t+2}")
    A(f"v_lshl_add_u32 v{t}, v{t+1}, 4, v{t}")
    A(f"v_and_b32 v{t+1}, 1, v{vLane}")
    A(f"v_lshl_add_u32 v{t}, v{t+1}, 3, v{t}")
    A(f"s_lshl_b32 s{sT0}, s{sW}, 11")
    A(f"s_add_u32 s{sT0}, s{sT0}, {RPS}")
    A(f"v_add_u32 v{vRPr}, s{sT0}, v{t}")
    A(f"v_xor_b32 v{vRPr+1}, 64, v{vRPr}")


def rp_items():
    L = ["@wait rpl\n" + "\n".join(
        f"ds_read_b64_tr_b16 {v(vRP+4*ns+2*part,2)}, v{vRPr+ns} offset:{1024*part}" for ns in range(2) for part in range(2))]
    S = [f"s_lshl_b32 s{sT0}, s{sGid}, 11\n" +
         "\n".join(f"buffer_store_dwordx4 {v(vRP+4*ns,4)}, v{vL16}, {s(SRD_W2,4)}, s{sT0} offen offset:{1024*ns} sc1  ##rps"
                   for ns in range(2))]
    return L, S


def bf16_round_items(dst, src):
    return [f"v_cvt_pk_bf16_f32 v{dst}, v{src}, v{src}", f"v_and_b32 v{dst}, s{sMask}, v{dst}"]


def st_items():
    L = []
    S, Q_ = [vQ, vQ + 2], [vQ + 1, vQ + 3]
    S2, Q2 = [vQ + 4, vQ + 6], [vQ + 5, vQ + 7]
    lo, hi = vQ + 8, vQ + 9
    lo2, hi2 = vQ + 10, vQ + 11
    for row in range(2):
        for i in range(4):
            l, h = (lo, hi) if i & 1 == 0 else (lo2, hi2)
            r = vSD + 4 * row + i
            L.append(f"v_lshlrev_b32 v{l}, 16, v{r}")
            L.append(f"v_and_b32 v{h}, s{sMask}, v{r}")
            if i == 0:
                L.append(f"v_mov_b32 v{S[row]}, v{l}")
                L.append(f"v_mov_b32 v{S2[row]}, v{h}")
                L.append(f"v_mul_f32 v{Q_[row]}, v{l}, v{l}")
                L.append(f"v_mul_f32 v{Q2[row]}, v{h}, v{h}")
            else:
                L.append(f"v_add_f32 v{S[row]}, v{S[row]}, v{l}")
                L.append(f"v_add_f32 v{S2[row]}, v{S2[row]}, v{h}")
                L.append(f"v_fmac_f32 v{Q_[row]}, v{l}, v{l}")
                L.append(f"v_fmac_f32 v{Q2[row]}, v{h}, v{h}")
    for row in range(2):
        L.append(f"v_add_f32 v{S[row]}, v{S[row]}, v{S2[row]}")
        L.append(f"v_add_f32 v{Q_[row]}, v{Q_[row]}, v{Q2[row]}")
    L.append(f"v_permlane32_swap_b32 v{S[0]}, v{S[1]}")
    L.append(f"v_permlane32_swap_b32 v{Q_[0]}, v{Q_[1]}")
    L.append(f"v_add_f32 v{S[0]}, v{S[0]}, v{S[1]}")
    L.append(f"v_add_f32 v{Q_[0]}, v{Q_[0]}, v{Q_[1]}")
    L.append(f"v_permlane16_swap_b32 v{S[0]}, v{Q_[0]}")
    T, U = S[0], Q_[0]
    L.append(f"v_add_f32 v{T}, v{T}, v{U}")
    for dpp in ("quad_perm:[1,0,3,2]", "quad_perm:[2,3,0,1]", "row_half_mirror", "row_mirror"):
        L.append(f"v_add_f32_dpp v{T}, v{T}, v{T} {dpp} row_mask:0xf bank_mask:0xf")
    L.append(f"v_mov_b32 v{U}, v{T}")
    L.append(f"v_permlane16_swap_b32 v{T}, v{U}")
    t0, t1 = vSTo, vSTo + 1
    inv = "0x3b124925"
    L.append(f"v_mul_f32 v{t0}, {inv}, v{T}")
    L.append(f"v_mul_f32 v{t1}, {inv}, v{U}")
    L.append(f"v_fma_f32 v{t1}, -v{t0}, v{t0}, v{t1}")
    L.append(f"v_max_f32 v{t1}, 0, v{t1}")
    L += bf16_round_items(t1, t1)
    L.append(f"v_add_f32 v{t1}, 0x3727c5ac, v{t1}")
    L += bf16_round_items(t1, t1)
    L.append(f"v_sqrt_f32 v{t1}, v{t1}")
    L.append(f"v_xor_b32 v{t0}, 0x80000000, v{t0}")
    L += bf16_round_items(t1, t1)
    L.append(f"v_rcp_f32 v{t1}, v{t1}")
    L.append(f"v_cvt_pk_bf16_f32 v{t0}, v{t0}, v{t0}")
    L.append(f"v_lshrrev_b32 v{vSTo+4}, 5, v{vLane}")
    L.append(f"v_lshlrev_b32 v{vSTo+4}, 4, v{vSTo+4}")
    L.append(tag_compute())
    L.append(f"v_mov_b32 v{vSTo+2}, s{sTag}")
    L.append(f"v_mov_b32 v{vSTo+3}, s{sTag}")
    return L


def st_store():
    return (f"s_lshl_b32 s{sT0}, s{sGid}, 5\ns_add_u32 s{sT0}, s{sT0}, {STAT}\n"
            f"s_mov_b32 exec_lo, 1\ns_mov_b32 exec_hi, 1\n"
            f"buffer_store_dwordx4 {v(vSTo,4)}, v{vSTo+4}, {s(SRD_FLG,4)}, s{sT0} offen sc1  ##sts\ns_mov_b64 exec, -1")


def st_load(dst_addr=2):
    return (f"v_and_b32 v{dst_addr}, 31, v{vLane}\nv_lshlrev_b32 v{dst_addr}, 4, v{dst_addr}\n"
            f"s_lshl_b32 s{sT0}, s{sR}, 2\ns_add_u32 s{sT0}, s{sT0}, s{sW}\ns_lshl_b32 s{sT0}, s{sT0}, 9\n"
            f"s_add_u32 s{sT0}, s{sT0}, {STAT}\n"
            f"buffer_load_dwordx4 {v(vST,4)}, v{dst_addr}, {s(SRD_FLG,4)}, s{sT0} offen sc1")


def st_check(side, spin_max=200000):
    slow, ok = Prog().new_label("slowS"), Prog().new_label("okS")

    def emit_slow(B):
        B.label(slow)
        B(f"s_mov_b32 s{sT3}, 0")
        lab = B.new_label("spinS")
        B.label(lab)
        B(st_load())
        B(f"s_add_u32 s{sT3}, s{sT3}, 1")
        B("s_waitcnt vmcnt(0)")
        B(f"v_cmp_ne_u32 vcc, s{sTag}, v{vST+2}")
        B(f"s_cbranch_vccz {ok}")
        B(f"s_cmp_lt_u32 s{sT3}, {spin_max}")
        B(f"s_cbranch_scc1 {lab}")
        B(f"s_branch {ok}")
    side.append(emit_slow)
    return f"v_cmp_ne_u32 vcc, s{sTag}, v{vST+2}\ns_nop 0\ns_cbranch_vccnz {slow}\n{ok}:"


def tag_compute():
    return (f"v_readfirstlane_b32 s{sTag}, v{vEpoch}\ns_mul_i32 s{sTag}, s{sTag}, 0x9e3779b1\n"
            f"s_add_u32 s{sTag}, s{sTag}, 0x7f4a7c15")


def flag_store(soff_reg, tmp=2):
    return (f"v_mov_b32 v{tmp}, s{soff_reg}\nv_mov_b32 v{tmp+1}, s{sTag}\ns_mov_b64 exec, 1\n"
            f"buffer_store_dword v{tmp+1}, v{tmp}, {s(SRD_FLG,4)}, 0 offen sc1\ns_mov_b64 exec, -1")


def poll_addr_w(A, dst, tmp):
    A(f"s_min_u32 s{sT0}, s{sNT}, 6")
    A(f"s_mul_i32 s{sT0}, s{sT0}, 144")
    A(f"s_mul_i32 s{sT1}, s{sW}, 28")
    A(f"s_add_u32 s{sT1}, s{sT1}, s{sT0}")
    A(f"s_lshl_b32 s{sT2}, s{sW}, 3")
    A(f"s_add_u32 s{sT2}, s{sT2}, s{sT0}")
    A(f"s_add_u32 s{sT2}, s{sT2}, {112-28}")
    A(f"v_mov_b32 v{dst}, s{sT1}")
    A(f"v_mov_b32 v{tmp}, s{sT2}")
    A(f"v_cmp_gt_u32 vcc, 28, v{vLane}")
    A(f"v_cndmask_b32 v{dst}, v{tmp}, v{dst}, vcc")
    A(f"v_min_u32 v{tmp}, 35, v{vLane}")
    A(f"v_add_u32 v{dst}, v{dst}, v{tmp}")
    A(f"v_lshlrev_b32 v{dst}, 2, v{dst}")
    A(f"v_add_u32 v{dst}, {F_P}, v{dst}")


def poll_addr_k(A, dst):
    A(f"s_lshl_b32 s{sT0}, s{sC}, 8")
    A(f"s_add_u32 s{sT0}, s{sT0}, {F_K}")
    A(f"v_lshlrev_b32 v{dst}, 2, v{vLane}")
    A(f"v_add_u32 v{dst}, s{sT0}, v{dst}")


def poll_addr_a(A, dst, base=F_A):
    A(f"v_and_b32 v{dst}, 7, v{vLane}")
    A(f"v_lshlrev_b32 v{dst}, 2, v{dst}")
    A(f"s_lshl_b32 s{sT0}, s{sMT}, 7")
    A(f"s_lshl_b32 s{sT1}, s{sW}, 5")
    A(f"s_add_u32 s{sT0}, s{sT0}, s{sT1}")
    if base:
        A(f"s_add_u32 s{sT0}, s{sT0}, {base}")
    A(f"v_add_u32 v{dst}, s{sT0}, v{dst}")


def spin(A, vaddr, vtmp, name, spin_max=200000):
    lab, done = A.new_label("spin" + name), A.new_label("sdone" + name)
    A(f"s_mov_b32 s{sT3}, 0")
    A.label(lab)
    A(f"buffer_load_dword v{vtmp}, v{vaddr}, {s(SRD_FLG,4)}, 0 offen sc1")
    A(f"s_add_u32 s{sT3}, s{sT3}, 1")
    A("s_waitcnt vmcnt(0)")
    A(f"v_cmp_ne_u32 vcc, s{sTag}, v{vtmp}")
    A(f"s_cbranch_vccz {done}")
    A(f"s_cmp_lt_u32 s{sT3}, {spin_max}")
    A(f"s_cbranch_scc1 {lab}")
    A.label(done)


def poll(reg):
    return f"buffer_load_dword v{reg}, v{reg}, {s(SRD_FLG,4)}, 0 offen sc1"


def check(A, side, reg, addr_fn, name):
    slow, ok = A.new_label("slow" + name), A.new_label("ok" + name)

    def emit_slow(B):
        B.label(slow)
        addr_fn(B)
        spin(B, 2, 3, name)
        B(f"s_branch {ok}")
    side.append(emit_slow)
    return f"v_cmp_ne_u32 vcc, s{sTag}, v{reg}\ns_nop 0\ns_cbranch_vccnz {slow}\n{ok}:"


def publish(tag, base):
    return (f"@wait {tag}\ns_lshl_b32 s{sT0}, s{sGid}, 2\ns_add_u32 s{sT0}, s{sT0}, {base}\n" + flag_store(sT0))


class W2Stream:
    def __init__(self):
        self.n = 0

    def adv(self, q):
        if q < 27:
            return (f"s_add_u32 s{sW2cur}, s{sW2cur}, 2048\ns_cmp_eq_u32 s{sW2cur}, s{sW2hi}\n"
                    f"s_cselect_b32 s{sW2cur}, s{sW2lo}, s{sW2cur}")
        if q == 27:
            return f"s_mov_b32 s{sW2cur}, s{sW2o}"
        return f"s_add_u32 s{sW2cur}, s{sW2cur}, 2048"

    def next(self):
        q, ns = self.n >> 1, self.n & 1
        r = w2reg(q)
        l = f"buffer_load_dwordx4 {r(ns)}, v{vW2a if ns == 0 else vW2b}, {s(SRD_W2,4)}, s{sW2cur} offen sc1"
        pre = "" if (ns == 1 or q == 0) else self.adv(q - 1) + "\n"
        self.n += 1
        return pre + l


def cf_items(t, b):
    c = vCS + 4 * b
    return [f"v_add_f32 v{c}, v{c}, v{c+1}",
            f"v_add_f32 v{c+2}, v{c+2}, v{c+3}",
            f"v_add_f32 v{c}, v{c}, v{c+2}",
            f"v_cvt_pk_bf16_f32 v{c+1}, v{c}, v{c}",
            f"v_and_b32 v{c+1}, s{sMask}, v{c+1}",
            f"v_sub_f32 v{c}, v{c}, v{c+1}",
            f"v_cvt_pk_bf16_f32 v{vCF+4*b}, v{c+1}, v{c}"]


def cs_read(t, b):
    return f"ds_read_b128 {v(vCS+4*b,4)}, v{vCSr} offset:{512*t}"


def epiF_items(t):
    ac = accF(t)
    L = []
    for j in range(0, 8, 2):
        L.append(f"v_max_f32 v{ac+j}, 0, v{ac+j}")
        L.append(f"v_mul_f32 v{ac+8+j}, v{vR2}, v{ac+8+j}")
        L.append(f"v_max_f32 v{ac+j+1}, 0, v{ac+j+1}")
        L.append(f"v_mul_f32 v{ac+8+j+1}, v{vR2}, v{ac+8+j+1}")
        L.append(f"v_mul_f32 v{ac+j}, v{ac+j}, v{ac+8+j}")
        L.append(f"v_mul_f32 v{ac+j+1}, v{ac+j+1}, v{ac+8+j+1}")
        L.append(f"v_cvt_pk_bf16_f32 v{ac+j//2}, v{ac+j}, v{ac+j+1}")
    L.append(f"s_add_u32 s{sT2}, s{sFo}, {1024*t}\n"
             f"buffer_store_dwordx4 {v(ac,4)}, v{vL16}, {s(SRD_ACT,4)}, s{sT2} offen sc1  ##f")
    return L


LOG2E = "0x3fb8aa3b"
EPS6 = "0x358637bd"
NEGEL = "0xb5c1a2a0"


def phi_items(src, scale, ta, tb, dst):
    E = vE
    L = []
    for i in range(2):
        L.append(f"v_fma_f32 v{tb+i}, v{src+i}, v{scale[i]}, v{E}")
    for i in range(2):
        L.append(f"v_fma_f32 v{ta+i}, v{tb+i}, v{E+1}, v{E+2}")
    for i in range(2):
        L.append(f"v_exp_f32 v{ta+i}, v{ta+i} clamp")
    for i in range(2):
        L.append(f"v_max_f32 v{tb+i}, v{E}, v{tb+i}")
    for i in range(2):
        L.append(f"v_add_f32 v{ta+i}, v{ta+i}, v{tb+i}")
    L.append(f"v_cvt_pk_bf16_f32 v{dst}, v{ta}, v{ta+1}")
    return L


def kv_items(side):
    E = vE
    RS = ACCQ
    L = [st_check(side),
         f"v_cndmask_b32 v{vM}, 0, v{vST}, {s(sLO,2)}",
         f"v_mul_f32 v{vR2}, v{vST+1}, v{vST+1}",
         f"v_and_b32 v2, 31, v{vLane}\nv_lshlrev_b32 v2, 2, v2\ns_lshl_b32 s{sT0}, s{sW}, 7\n"
         f"s_add_u32 s{sT0}, s{sT0}, {RSTD}\nv_add_u32 v2, s{sT0}, v2\nds_write_b32 v2, v{vST+1}"]
    L += cf_items(8, 0)
    L.append(f"v_mfma_f32_32x32x16_bf16 {v(ACCK,16)}, {v(vM,4)}, {v(vCF,4)}, {v(ACCK,16)}")
    L.append(f"v_lshrrev_b32 v2, 5, v{vLane}\nv_lshlrev_b32 v2, 4, v2\ns_lshl_b32 s{sT0}, s{sW}, 7\n"
             f"s_add_u32 s{sT0}, s{sT0}, {RSTD}\nv_add_u32 v2, s{sT0}, v2\n" +
             "\n".join(f"ds_read_b128 {v(RS+4*g,4)}, v2 offset:{32*g}" for g in range(4)))
    L += cf_items(9, 1)
    L.append(f"v_mfma_f32_32x32x16_bf16 {v(ACCV,16)}, {v(vM,4)}, {v(vCF+4,4)}, {v(ACCV,16)}")
    L.append(f"v_mov_b32 v{E}, {EPS6}")
    L.append(f"v_mov_b32 v{E+1}, {LOG2E}")
    L.append(f"v_mov_b32 v{E+2}, {NEGEL}")
    L.append(f"v_mov_b32 v{E+3}, 0x3f803f80")
    L.append(f"v_and_b32 v3, 31, v{vLane}\nv_cmp_eq_u32 {s(sL28,2)}, 28, v3")
    for j in range(0, 16, 2):
        ta = E + 4 + 4 * ((j >> 1) & 1)
        L += phi_items(ACCK + j, (RS + j, RS + j + 1), ta, ta + 2, PK + j // 2)
    v0_ = ACCV
    for j in range(0, 16, 2):
        L.append(f"v_mul_f32 v{v0_+j}, v{v0_+j}, v{RS+j}")
        L.append(f"v_mul_f32 v{v0_+j+1}, v{v0_+j+1}, v{RS+j+1}")
        L.append(f"v_cvt_pk_bf16_f32 v{v0_+j//2}, v{v0_+j}, v{v0_+j+1}")
        L.append(f"v_cndmask_b32 v{v0_+j//2}, v{v0_+j//2}, v{E+3}, {s(sL28,2)}")
    KV = ACCK
    for u in range(2):
        C = "0" if u == 0 else v(KV, 16)
        L.append(f"v_mfma_f32_32x32x16_bf16 {v(KV,16)}, {v(PK+4*u,4)}, {v(v0_+4*u,4)}, {C}")
    Wr = [f"s_lshl_b32 s{sT0}, s{sW}, 12\ns_add_u32 s{sT0}, s{sT0}, {KVX}\nv_add_u32 v2, s{sT0}, v{vL16}\n" +
          "\n".join(f"ds_write_b128 v2, {v(KV+4*g,4)} offset:{1024*g}" for g in range(4))]
    R = [f"s_lshl_b32 s{sT0}, s{sW}, 10\ns_add_u32 s{sT0}, s{sT0}, {KVX}\nv_add_u32 v2, s{sT0}, v{vL16}\n" +
         "\n".join(f"ds_read_b128 {v(KV+4*w,4)}, v2 offset:{4096*w}" for w in range(4))]
    for (x, y) in ((0, 4), (8, 12), (0, 8)):
        for i in range(4):
            R.append(f"v_add_f32 v{KV+x+i}, v{KV+x+i}, v{KV+y+i}")
    R.append(kv_store(KV))
    return L, Wr, R


def kv_store(KV):
    return (f"s_lshl_b32 s{sT3}, s{sC}, 4\ns_add_u32 s{sT3}, s{sT3}, s{sR}\ns_lshl_b32 s{sT3}, s{sT3}, 2\n"
            f"s_add_u32 s{sT3}, s{sT3}, s{sW}\ns_lshl_b32 s{sT3}, s{sT3}, 10\n"
            f"buffer_store_dwordx4 {v(KV,4)}, v{vL16}, {s(SRD_KVP,4)}, s{sT3} offen sc1  ##kv")


def flag_rowtile(tag, base):
    return (f"@wait {tag}\ns_lshl_b32 s{sT2}, s{sR}, 8\ns_lshr_b32 s{sT3}, s{sW}, 1\ns_lshl_b32 s{sT3}, s{sT3}, 7\n"
            f"s_add_u32 s{sT2}, s{sT2}, s{sT3}\ns_lshl_b32 s{sT3}, s{sC}, 3\ns_add_u32 s{sT2}, s{sT2}, s{sT3}\n"
            f"s_and_b32 s{sT3}, s{sW}, 1\ns_lshl_b32 s{sT3}, s{sT3}, 2\ns_add_u32 s{sT2}, s{sT2}, s{sT3}\n"
            + (f"s_add_u32 s{sT2}, s{sT2}, {base}\n" if base else "") + flag_store(sT2))


def flag_k():
    return (f"@wait kv\ns_lshl_b32 s{sT2}, s{sC}, 8\ns_lshl_b32 s{sT3}, s{sR}, 4\ns_add_u32 s{sT2}, s{sT2}, s{sT3}\n"
            f"s_lshl_b32 s{sT3}, s{sW}, 2\ns_add_u32 s{sT2}, s{sT2}, s{sT3}\ns_add_u32 s{sT2}, s{sT2}, {F_K}\n"
            + flag_store(sT2))


def cs_export(reg, idx, tmp):
    return f"v_accvgpr_read_b32 v{tmp}, a{reg}\nds_write_b32 v{vCSw}, v{tmp} offset:{512*idx}"


def phase1(A, stamp, side, w2):
    cap, capA = PAR["cap"], PAR["capA"]
    W = Weave()
    pos = {}
    accA = [ACCK, ACCV]
    for n in range(28):
        j, p = divmod(n, 4)
        lo = W.n()
        for t in range(2):
            W.add(mf(v(accA[t], 16), a(xf(j, p), 4), a(kf(n, t), 4), n == 0), capA)
            if p == 0:
                W.add(m16(aCS + 4 * t, a(kf(n, t), 4), j == 0), 2)
        pos[n] = (lo, W.n())
    for n in range(28, 56):
        g, p = divmod(n, 4)
        j = g - 7
        lo = W.n()
        for t in range(7):
            W.add(mf(v(accF(t), 16), a(wf(p & 1, t), 4), a(xf(j, p), 4), n == 28), cap)
            if p == 0:
                W.add(m16(aCS + 4 * t, a(wf(0, t), 4), j == 0), 2)
        pos[n] = (lo, W.n())
    fold_at = {PAR["f0"] + PAR["fstep"] * t: t for t in range(7)}
    foldg = {}
    for i in range(28):
        jj, p = divmod(i, 4)
        lo = W.n()
        if i in fold_at:
            t = fold_at[i]
            foldg[t] = W.add(mf(v(accF(t), 16), v(vCF + 4 * (t & 1), 4), v(vM, 4), False), cap)
        W.add(mf(v(ACCQ, 16), a(qf(i), 4), a(xf(jj, p), 4), i == 0), cap)
        if p == 0:
            W.add(m16(aCSQ, a(qf(i), 4), jj == 0), 2)
        pos[56 + i] = (lo, W.n())
    end = W.n()
    P = lambda key, off=0: pos[PAR[key]][0] + off
    for n in range(26):
        lo, hi = pos[n]
        W.plan(readsA(n + 2), lo, [3, 0, 2] if (n & 3) == 0 else [3, 2])
    R = readsB(28)
    W.plan(R[:8], pos[26][0], [4, 4])
    W.plan(R[8:], pos[27][0] + 1, [6])
    for n in range(28, 55):
        lo, hi = pos[n]
        cnt = [3, 0, 3, 0, 3, 0, 3, 0, 2] if (n & 3) == 0 else [3, 3, 3, 3, 2]
        W.plan(readsB(n + 1), lo, cnt)
    lo, hi = pos[55]
    W.plan(readsC(0) + readsC(1) + readsC(2), lo + 1, [2, 2, 2])
    for i in range(25):
        W.pin(pos[56 + i][1] - 1 if (i & 3) else pos[56 + i][1] - 2, "\n".join(readsC(i + 3)))
    bar = {}
    for g in range(14):
        n = 4 * g + (2 if g < 7 else 3)
        bar[g] = pos[n][0]
        W.before(bar[g], f"@wait G{g+1} lgkm0")
        W.before(bar[g], "s_barrier")
    U23 = group_units(2) + group_units(3)
    for k, u in enumerate(U23):
        W.pin(pos[0][0] + (k * (pos[1][1] - pos[0][0])) // len(U23), unit_item(u))
    for g in range(11):
        W.put_dma(group_units(g + 4), bar[g], bar[g + 1])
    L, St = rp_items()
    W.pin(P("sts"), st_store())
    W.pin(P("rpl"), L[0])
    W.pin(P("rps"), St[0])
    W.pin(P("pubP"), publish("rps", F_P))
    W.pin(P("ldS"), st_load())
    W.pin(P("polW", 6), poll(vPollW))
    if not OPT.get("nopf"):
        W.pin(P("pfB"), f"buffer_load_dword v251, v{vPB}, {s(SRD_GU,4)}, 0 offen")
        W.pin(P("pfC", 6), f"buffer_load_dword v252, v{vPC}, {s(SRD_QKV,4)}, 0 offen")
        if not OPT.get("nopfw"):
            W.pin(P("pfW", 6), f"buffer_load_dword v253, v{vPW}, {s(SRD_W2,4)}, 0 offen sc1\n"
                               f"v_add_u32 v{vPW}, 8192, v{vPW}\n"
                               f"buffer_load_dword v254, v{vPW}, {s(SRD_W2,4)}, 0 offen sc1")
    W.pin(pos[25][0], cs_export(aCS, 8, vE))
    W.pin(pos[25][0] + 1, cs_export(aCS + 4, 9, vE + 1))
    z = [f"v_mov_b32 v{vCF+4*b+k}, 0" for b in range(2) for k in range(1, 4)]
    z += [f"v_mov_b32 v{vM+k}, 0" for k in range(1, 4)]
    W.spread(z, pos[20][0], pos[24][1])
    W.pin(pos[27][0], cs_read(8, 0))
    W.pin(pos[27][0], cs_read(9, 1))
    K1, Kw, K2 = kv_items(side)
    W.spread(K1, P("kv0"), P("kvw") - 1)
    W.pin(P("kvw") - 1, Kw[0])
    assert P("kvw") in bar.values(), "kvw must be a barrier position"
    W.spread(K2, P("kvw") + 1, P("kvw") + 12)
    W.pin(P("pubK"), flag_k())
    W.pin(P("polK", 1), poll(vPollK))
    W.pin(P("chkW", 3), check(A, side, vPollW, lambda B: poll_addr_w(B, 2, 3), "W"))
    W.spread([w2.next() for _ in range(8)], P("w2a"), P("w2a") + 40)
    cs = [cs_export(aCS + 4 * t, t, vE + (t & 3)) for t in range(7)]
    W.spread(cs, pos[53][0] + 2, pos[54][1])
    W.pin(pos[55][0], cs_read(0, 0))
    W.pin(pos[55][0], cs_read(1, 1))
    fe = lambda t: foldg[t + 1] + 2 if t < 6 else end
    for t in range(7):
        g = foldg[t]
        prev = foldg[t - 1] + 1 if t else pos[55][0] + 1
        if t == 0:
            W.spread(cf_items(t, 0), pos[55][0] + 2, g)
        else:
            W.spread(cf_items(t, t & 1), prev, g)
        if t + 2 < 7:
            W.pin(g, cs_read(t + 2, t & 1))
    for t in range(7):
        W.spread(epiF_items(t), foldg[t] + 2, fe(t))
    it = [w2.next() for _ in range(20)]
    W.spread(it, pos[57][0], end)
    W.pin(pos[82][0], cs_export(aCSQ, 7, vE + 4))
    for n, key in ((27, ("st", 0)), (55, ("st", 1)), (39, ("st", 2)), (47, ("st", 3)), (13, ("st", 4))):
        st = stamp.text(key)
        if st:
            W.pin(pos[n][1] - 1, st)
    A("@wait G0")
    A("s_barrier")
    stamp(A, 1)
    A.ext(readsA(0))
    A.ext(readsA(1))
    W.emit(A)
    if OPT.get("report"):
        print("phase1 load:", W.load_report())
```

```python
from tlib import *
import u1 as q1
from u1 import (ACT_BYTES, F_A, F_O, F_K, EPOCH, SRD_FLG, SRD_KVP, SRD_ACT, sMT, sNT, sTag, sOUTp, sW, sC, sR, sFo,
                w2reg, spin, flag_store, vL16, vLane, vE, ACCQ, vST, vCF, vM, KFX, sLO)

sXp = 4
SRD_X, SRD_OUT = 24, 40
sT0, sT1, sT2, sT3 = 48, 49, 50, 51
sHcur, sHlo, sHhi, sPQ = 56, 57, 58, 59
vT = 2
vHA, vHB = 4, 5
vXR = 16
vOO = 14
vACC = 32
KP = 32
NUM = 96
KF = 112
FIN = 0
OPT = {"nh": 8, "pre": 6, "opoll": 14, "ochk": 19, "pubo": 2, "w2x": 12, "w2y": 14}


def acc(j):
    return vACC + 16 * j


def hslot(i, off=0, n=4):
    i %= OPT["nh"]
    if i < 6:
        return v(96 + 8 * i + off, n)
    return v(192 + 8 * (i - 6) + off, n)


class Items:
    def __init__(self):
        self.L = []
    def __call__(self, s):
        self.L.append(s)
    def ext(self, l):
        self.L.extend(l)


def merge(A, main, extra, start=0):
    n = len(main) - start
    k = 0
    for i, it in enumerate(main):
        A(it)
        if i >= start:
            want = (len(extra) * (i - start + 1)) // n
            while k < want:
                A(extra[k]); k += 1
    while k < len(extra):
        A(extra[k]); k += 1


def h_load(kk):
    return [f"buffer_load_dwordx4 {hslot(kk,0)}, v{vHA}, {s(SRD_ACT,4)}, s{sHcur} offen sc1  ##h{kk}",
            f"buffer_load_dwordx4 {hslot(kk,4)}, v{vHB}, {s(SRD_ACT,4)}, s{sHcur} offen sc1  ##h{kk}"]


def h_adv(kk):
    if kk < 27:
        return f"s_add_u32 s{sHcur}, s{sHcur}, 1024\ns_cmp_eq_u32 s{sHcur}, s{sHhi}\ns_cselect_b32 s{sHcur}, s{sHlo}, s{sHcur}"
    if kk == 27:
        return f"s_mov_b32 s{sHcur}, s{sPQ}"
    return f"s_add_u32 s{sHcur}, s{sHcur}, 1024"


def tail(A, stamp, side, w2, lend):
    E = vE
    A("s_waitcnt lgkmcnt(0)")
    A("s_barrier")
    A(q1.cs_read(7, 0))
    A(q1.check(A, side, q1.vPollK, lambda B: q1.poll_addr_k(B, 2), "K"))
    A(f"s_lshl_b32 s{sT0}, s{sC}, 16")
    A(f"s_lshl_b32 s{sT1}, s{sW}, 10")
    A(f"s_add_u32 s{sT0}, s{sT0}, s{sT1}")
    for p in range(16):
        A(f"buffer_load_dwordx4 {v(KP+4*p,4)}, v{vL16}, {s(SRD_KVP,4)}, s{sT0} offen sc1")
        if p < 15:
            A(f"s_add_u32 s{sT0}, s{sT0}, 4096")
    stamp(A, 3)
    I = Items()
    I.ext(q1.cf_items(7, 0))
    I(f"v_mfma_f32_32x32x16_bf16 {v(ACCQ,16)}, {v(vCF,4)}, {v(vM,4)}, {v(ACCQ,16)}")
    I(f"v_mov_b32 v{E}, {q1.EPS6}")
    I(f"v_mov_b32 v{E+1}, {q1.LOG2E}")
    I(f"v_mov_b32 v{E+2}, {q1.NEGEL}")
    for j in range(0, 16, 2):
        ta = E + 4 + 4 * ((j >> 1) & 1)
        I.ext(q1.phi_items(ACCQ + j, (vST + 1, vST + 1), ta, ta + 2, ACCQ + j // 2))
    I(f"v_cndmask_b32 v{ACCQ+6}, 0, v{ACCQ+6}, {s(sLO,2)}")
    I(f"v_cndmask_b32 v{ACCQ+7}, 0, v{ACCQ+7}, {s(sLO,2)}")
    merge(A, I.L, [w2.next() for _ in range(OPT["w2x"])], start=2)
    A(q1.flag_rowtile("f", F_A))
    stamp(A, 4)
    q1.poll_addr_a(A, q1.vPollA)
    A(q1.poll(q1.vPollA))
    I = Items()
    for stp in (1, 2, 4, 8):
        for p in range(0, 16, 2 * stp):
            for i in range(4):
                I(f"v_add_f32 v{KP+4*p+i}, v{KP+4*p+i}, v{KP+4*(p+stp)+i}")
    I(f"v_cvt_pk_bf16_f32 v{KP+4}, v{KP}, v{KP+1}")
    I(f"v_cvt_pk_bf16_f32 v{KP+5}, v{KP+2}, v{KP+3}")
    I(f"s_lshr_b32 s{sT0}, s{sW}, 1\ns_lshl_b32 s{sT0}, s{sT0}, 10\ns_and_b32 s{sT1}, s{sW}, 1\ns_lshl_b32 s{sT1}, s{sT1}, 3\n"
      f"s_add_u32 s{sT0}, s{sT0}, s{sT1}\ns_add_u32 s{sT0}, s{sT0}, {KFX}\nv_add_u32 v{vT}, s{sT0}, v{vL16}\n"
      f"ds_write_b64 v{vT}, {v(KP+4,2)}")
    merge(A, I.L, [w2.next() for _ in range(OPT["w2y"])], start=8)
    A("s_waitcnt lgkmcnt(0)")
    A("s_barrier")
    A(f"v_add_u32 v{vT}, {KFX}, v{vL16}")
    for u in range(2):
        A(f"ds_read_b128 {v(KF+4*u,4)}, v{vT} offset:{1024*u}")
    for u in range(2):
        A(f"v_mfma_f32_32x32x16_bf16 {v(NUM,16)}, {v(KF+4*u,4)}, {v(ACCQ+4*u,4)}, {'0' if u == 0 else v(NUM,16)}")
    rest = []
    while w2.n < 72:
        rest.append(w2.next())
    I = Items()
    n = NUM
    I(f"v_mov_b32 v{vT}, v{n+12}\nv_mov_b32 v{vT+1}, v{n+12}\nv_permlane32_swap_b32 v{vT}, v{vT+1}\n"
      f"v_add_f32 v{vT}, {q1.EPS6}, v{vT+1}\nv_rcp_f32 v{vT}, v{vT}")
    for j in range(0, 16, 2):
        I(f"v_mul_f32 v{n+j}, v{n+j}, v{vT}\nv_mul_f32 v{n+j+1}, v{n+j+1}, v{vT}\n"
          f"v_cvt_pk_bf16_f32 v{n+j//2}, v{n+j}, v{n+j+1}")
    I(f"v_cndmask_b32 v{n+6}, 0, v{n+6}, {s(sLO,2)}\nv_cndmask_b32 v{n+7}, 0, v{n+7}, {s(sLO,2)}")
    for x in rest[:4]:
        A(x)
    A.ext(I.L)
    A(f"s_mul_i32 s{sT2}, s{sC}, {5*1024}\ns_sub_u32 s{sT2}, s{sFo}, s{sT2}\ns_add_u32 s{sT2}, s{sT2}, {112*1024}")
    for u in range(2):
        A(f"buffer_store_dwordx4 {v(n+4*u,4)}, v{vL16}, {s(SRD_ACT,4)}, s{sT2} offen offset:{1024*u} sc1  ##o")
    for x in rest[4:]:
        A(x)
    stamp(A, 5)
    idle = A.new_label("noph2")

    def emit_idle(B):
        B.label(idle)
        B("s_waitcnt vmcnt(0)")
        B(q1.flag_rowtile("o", F_O).replace("@wait o\n", ""))
        B(f"s_branch {lend}")
    side.append(emit_idle)
    A(f"s_cmp_eq_u32 s{sNT}, 7")
    A(f"s_cbranch_scc1 {idle}")


def phase2(A, stamp, side):
    A(f"s_mul_i32 s{sT0}, s{sMT}, {2*144*1024}")
    A(f"s_mul_i32 s{sT1}, s{sW}, {28*1024}")
    A(f"s_add_u32 s{sHlo}, s{sT0}, s{sT1}")
    A(f"s_add_u32 s{sHhi}, s{sHlo}, {28*1024}")
    A(f"s_lshl_b32 s{sT1}, s{sW}, 13")
    A(f"s_add_u32 s{sPQ}, s{sT0}, s{sT1}")
    A(f"s_add_u32 s{sPQ}, s{sPQ}, {112*1024}")
    A(f"s_lshl_b32 s{sT1}, s{sNT}, 12")
    A(f"s_add_u32 s{sHcur}, s{sHlo}, s{sT1}")
    A(f"s_and_b32 s{sT0}, s{sW}, 1")
    A(f"s_mul_i32 s{sT0}, s{sT0}, {144*1024}")
    A(f"s_sub_u32 s{sT1}, {144*1024}, s{sT0}")
    A(f"v_add_u32 v{vHA}, s{sT0}, v{vL16}")
    A(f"v_add_u32 v{vHB}, s{sT1}, v{vL16}")
    A(q1.check(A, side, q1.vPollA, lambda B: q1.poll_addr_a(B, 2), "A"))
    stamp(A, 7)
    nxt = 0
    NH = OPT["nh"]

    def issue_h():
        nonlocal nxt
        if nxt > 0:
            A(h_adv(nxt - 1))
        A.ext(h_load(nxt))
        nxt += 1
    for _ in range(OPT["pre"]):
        issue_h()
    srd(A, SRD_X, sXp, 2048 * 896)
    srd(A, SRD_OUT, sOUTp, 2048 * 896)
    A(f"v_and_b32 v{vOO}, 31, v{vLane}")
    A(f"v_mul_u32_u24 v{vOO}, 896, v{vOO}")
    A(f"s_lshl_b32 s{sT0}, s{sMT}, 1")
    A(f"s_and_b32 s{sT1}, s{sW}, 1")
    A(f"s_add_u32 s{sT0}, s{sT0}, s{sT1}")
    A(f"s_mul_i32 s{sT0}, s{sT0}, {32*896}")
    A(f"s_lshl_b32 s{sT1}, s{sNT}, 7")
    A(f"s_add_u32 s{sT0}, s{sT0}, s{sT1}")
    A(f"s_lshr_b32 s{sT1}, s{sW}, 1")
    A(f"s_lshl_b32 s{sT1}, s{sT1}, 6")
    A(f"s_add_u32 s{sT0}, s{sT0}, s{sT1}")
    A(f"v_add_u32 v{vOO}, s{sT0}, v{vOO}")
    A(f"v_lshrrev_b32 v{vT}, 5, v{vLane}")
    A(f"v_lshlrev_b32 v{vT}, 3, v{vT}")
    A(f"v_add_u32 v{vT}, v{vT}, v{vOO}")
    for g in range(4):
        A(f"buffer_load_dwordx2 {v(vXR+2*g,2)}, v{vT}, {s(SRD_X,4)}, 0 offen offset:{16*g}")
    vP = 6

    def addr_o(B, d):
        q1.poll_addr_a(B, d, F_O)

    stamp(A, ("h", "i"))
    for kk in range(36):
        stamp(A, ("h", kk))
        r = w2reg(kk)
        for ns in range(2):
            for ss in range(2):
                j = 2 * ns + ss
                C = "0" if kk == 0 else v(acc(j), 16)
                A(f"v_mfma_f32_32x32x16_bf16 {v(acc(j),16)}, {r(ns)}, {hslot(kk,4*ss)}, {C}")
        if kk == OPT["ochk"]:
            A(q1.check(A, side, vP, lambda B: addr_o(B, 2), "O"))
            stamp(A, 6)
        k = 0
        while nxt < 36 and nxt < kk + 1 + NH and k < 2:
            assert nxt < 28 or kk >= OPT["ochk"], (nxt, kk)
            issue_h(); k += 1
        if kk == OPT["pubo"]:
            A(q1.flag_rowtile("o", F_O))
        if kk == OPT["opoll"]:
            addr_o(A, vP)
            A(q1.poll(vP))
    stamp(A, 8)
    assert nxt == 36
    for j in range(1, 4):
        A(f"s_xor_b32 s{sT0}, s{sW}, {j}")
        A(f"s_mul_i32 s{sT0}, s{sT0}, {3*4096}")
        A(f"v_add_u32 v{vT}, s{sT0}, v{vL16}")
        for g in range(4):
            A(f"ds_write_b128 v{vT}, {v(acc(j)+4*g,4)} offset:{FIN + (j-1)*4096 + g*1024}")
    A(f"s_mul_i32 s{sT0}, s{sW}, {3*4096}")
    A(f"v_add_u32 v{vT}, s{sT0}, v{vL16}")
    A("s_waitcnt lgkmcnt(0)")
    A("s_barrier")
    R = 96
    for j in range(3):
        for g in range(4):
            A(f"ds_read_b128 {v(R+16*j+4*g,4)}, v{vT} offset:{FIN + j*4096 + g*1024}")
    a0 = acc(0)
    for g in range(4):
        for e in range(2):
            A(f"v_lshlrev_b32 v{vT+1}, 16, v{vXR+2*g+e}")
            A(f"v_add_f32 v{a0+4*g+2*e}, v{a0+4*g+2*e}, v{vT+1}")
            A(f"v_and_b32 v{vT+1}, 0xffff0000, v{vXR+2*g+e}")
            A(f"v_add_f32 v{a0+4*g+2*e+1}, v{a0+4*g+2*e+1}, v{vT+1}")
    for j in range(3):
        for i in range(0, 16, 2):
            A(f"v_pk_add_f32 {v(a0+i,2)}, {v(a0+i,2)}, {v(R+16*j+i,2)}")
    P = vXR
    for g in range(4):
        for e in range(2):
            A(f"v_cvt_pk_bf16_f32 v{P+2*g+e}, v{a0+4*g+2*e}, v{a0+4*g+2*e+1}")
    A(f"v_lshrrev_b32 v{vT}, 5, v{vLane}")
    A(f"v_lshlrev_b32 v{vT}, 4, v{vT}")
    A(f"v_add_u32 v{vT}, v{vT}, v{vOO}")
    for pr in range(2):
        A(f"v_permlane32_swap_b32 v{P+4*pr}, v{P+4*pr+2}")
        A(f"v_permlane32_swap_b32 v{P+4*pr+1}, v{P+4*pr+3}")
    for pr in range(2):
        A(f"buffer_store_dwordx4 {v(P+4*pr,4)}, v{vT}, {s(SRD_OUT,4)}, 0 offen offset:{32*pr}")
    skip = A.new_label("noepoch")
    A(f"s_or_b32 s{sT0}, s2, s{sW}")
    A(f"s_cmp_lg_u32 s{sT0}, 0")
    A(f"s_cbranch_scc1 {skip}")
    A(f"s_mov_b32 s{sT0}, {EPOCH}")
    A(flag_store(sT0))
    A.label(skip)
```

```python
import sys, argparse
sys.path.insert(0, "gen")
from tlib import *
import u1 as q1, u2 as q2

PROF_OFF = 0x4000000


class Stamp:
    def __init__(self, enable, named=None, only=None):
        self.enable = enable
        self.named = named or {}
        self.only = only
    def text(self, idx):
        if isinstance(idx, tuple):
            idx = self.named.get(idx)
            if idx is None:
                return None
        elif self.only is not None and idx not in self.only:
            return None
        if not self.enable:
            return None
        return f"s_memtime s[96:97]\ns_waitcnt lgkmcnt(0)\ns_mov_b32 s{84+idx}, s96"
    def __call__(self, A, idx):
        t = self.text(idx)
        if t:
            A(t)
    def flush(self, A, n, sws):
        if not self.enable:
            return
        srd(A, 16, sws, 0x100000, PROF_OFF)
        A("v_lshrrev_b32 v2, 6, v0")
        A("v_lshlrev_b32 v2, 6, v2")
        A("s_lshl_b32 s96, s2, 8")
        A("v_add_u32 v2, s96, v2")
        for i in range(n):
            A(f"v_mov_b32 v3, s{84+i}")
            A(f"buffer_store_dword v3, v2, s[16:19], 0 offen offset:{4*i}")
        A("s_memrealtime s[96:97]")
        A("s_waitcnt lgkmcnt(0)")
        A("v_mov_b32 v3, s96")
        A(f"buffer_store_dword v3, v2, s[16:19], 0 offen offset:52")
        A("s_waitcnt vmcnt(0)")


def build(mode):
    kern = NAME + "_kernel"
    en = mode != ""
    if mode == "p":
        st = Stamp(en, named={("p", i): i + 2 for i in range(5)} | {("st", 4): 7, ("st", 0): 8, ("st", 2): 9, ("st", 1): 10},
                   only=(0, 1, 11))
    elif mode == "h":
        st = Stamp(en, named={("h", "i"): 1, ("h", 0): 2, ("h", 1): 3, ("h", 6): 4, ("h", 12): 5, ("h", 20): 6,
                              ("h", 28): 9}, only=(0, 7, 8, 11))
    else:
        st = Stamp(en, named={("st", 0): 2, ("st", 1): 9})
    A = Prog()
    side = []
    ex = "L_exit"
    lend = "L_end"
    A(khead(kern))
    q1.prologue(A, ex, st)
    w2 = q1.W2Stream()
    q1.phase1(A, st, side, w2)
    if mode == "c":
        st(A, 10)
    if q1.OPT.get("exit1"):
        A("s_waitcnt vmcnt(0) lgkmcnt(0)")
        A(f"s_branch {lend}")
    q2.tail(A, st, side, w2, lend)
    q2.phase2(A, st, side)
    A(f"s_branch {lend}")
    rep = []
    lines = A.finalize(rep)
    B = Prog()
    for e in side:
        e(B)
    lines += B.finalize()
    C = Prog()
    C.label(lend)
    st(C, 11)
    st.flush(C, 12, q1.sWS)
    C.label(ex)
    C("s_endpgm")
    lines += C.finalize(rep)
    if q1.OPT.get("report"):
        for r in rep:
            print("nop", r)
    return lines


def main():
    ap = argparse.ArgumentParser()
    ap.add_argument("--out", default="U.s")
    ap.add_argument("--prof", default="", help="c|p|h")
    ap.add_argument("--par", default="")
    ap.add_argument("--p2", default="")
    ap.add_argument("--opt", default="")
    args = ap.parse_args()
    for o in args.opt.split(","):
        if o:
            q1.OPT[o] = True
    for kv in args.par.split(","):
        if kv:
            k, z = kv.split("=")
            assert k in q1.PAR
            q1.PAR[k] = int(z)
    for kv in args.p2.split(","):
        if kv:
            k, z = kv.split("=")
            assert k in q2.OPT
            q2.OPT[k] = int(z)
    lines = build(args.prof)
    hdr = f"; @launch grid=(256,1,1) block=(256,1,1) lds={q1.LDS_BYTES}"
    txt = (hdr + "\n" + '.amdgcn_target "amdgcn-amd-amdhsa--gfx950"\n.text\n' + text_of(lines) +
           '.section .rodata,"a"\n.p2align 6\n' + desc(NAME + "_kernel"))
    open(args.out, "w").write(txt)
    print("wrote", args.out, len(txt), "bytes")


main()
```

```python
import re
from common import v, a, s, srd, desc, khead, NAME

REG = re.compile(r"^(-|\|)?([vas])(\d+|\[(\d+):(\d+)\])\|?$")
TRANS = ("v_exp_f32", "v_rcp_f32", "v_sqrt_f32", "v_rsq_f32", "v_log_f32")


def regs_of(tok):
    tok = tok.strip()
    if tok in ("vcc", "vcc_lo", "vcc_hi"):
        return [("s", "vcc")]
    if tok == "m0":
        return [("s", "m0")]
    if tok.startswith("exec"):
        return [("s", "exec")]
    m = REG.match(tok)
    if not m:
        return []
    k = m.group(2)
    if m.group(4) is not None:
        return [(k, i) for i in range(int(m.group(4)), int(m.group(5)) + 1)]
    return [(k, int(m.group(3)))]


class Ins:
    __slots__ = ("text", "op", "defs", "uses", "cls", "passes", "srcC", "srcAB", "lds", "tag", "wide", "dpp")

    def __init__(self, text, tag=None):
        self.text = text
        self.tag = tag
        t = text.strip()
        sp = t.split(None, 1)
        op = sp[0]
        self.op = op
        rest = sp[1] if len(sp) > 1 else ""
        toks = [x.strip() for x in rest.split(",")] if rest else []
        mods = ""
        if toks:
            z = toks[-1].split(None, 1)
            toks[-1] = z[0]
            mods = z[1] if len(z) > 1 else ""
        R = [regs_of(x) for x in toks]
        self.defs, self.uses = [], []
        self.passes = 0
        self.srcC, self.srcAB = [], []
        self.lds = False
        self.wide = False
        self.dpp = ("quad_perm" in mods) or ("row_" in mods)
        flat = lambda L: [r for x in L for r in x]
        if op.startswith("v_mfma"):
            self.cls = "mfma"
            self.passes = 8 if "32x32x16" in op else 4
            self.defs = R[0]; self.srcAB = R[1] + R[2]; self.srcC = R[3]
            self.uses = self.srcAB + self.srcC
        elif op.startswith("v_"):
            self.cls = "valu"
            if op.startswith("v_cmp"):
                self.defs = R[0]; self.uses = flat(R[1:])
            elif op.startswith("v_permlane"):
                self.defs = R[0] + R[1]; self.uses = R[0] + R[1]
            elif op.startswith(("v_fmac", "v_mac", "v_dot2c")):
                self.defs = R[0]; self.uses = flat(R)
            else:
                self.defs = R[0]; self.uses = flat(R[1:])
        elif op.startswith("ds_read"):
            self.cls = "dsr"; self.defs = R[0]; self.uses = flat(R[1:])
        elif op.startswith("ds_write"):
            self.cls = "dsw"; self.uses = flat(R)
        elif op.startswith("buffer_load"):
            if " lds" in (" " + mods):
                self.cls = "vml"; self.lds = True; self.uses = flat(R) + [("s", "m0")]
            else:
                self.cls = "vml"; self.defs = R[0]; self.uses = flat(R[1:])
        elif op.startswith(("buffer_store", "buffer_atomic")):
            self.cls = "vms"; self.uses = flat(R)
            self.wide = ("x4" in op) or ("x3" in op)
            self.srcC = R[0]
        elif op.startswith(("s_load", "s_memtime", "s_memrealtime")):
            self.cls = "smem"; self.defs = R[0]; self.uses = flat(R[1:])
        elif op in ("s_waitcnt", "s_nop", "s_barrier", "s_branch", "s_endpgm", "s_setprio", "s_sleep") or op.startswith("s_cbranch"):
            self.cls = "ctl"
        elif op.startswith("s_cmp") or op.startswith("s_bitcmp"):
            self.cls = "salu"; self.uses = flat(R)
        elif op.startswith("s_"):
            self.cls = "salu"; self.defs = R[0]; self.uses = flat(R[1:])
        else:
            raise ValueError("unknown instruction: " + text)


class Prog:
    def __init__(self):
        self.items = []
        self.uid = Prog.UID
        self.tagmap = {}
    UID = [0]

    def __call__(self, text, tag=None):
        for line in text.split("\n"):
            line = line.strip()
            if not line:
                continue
            tg = tag
            if "  ##" in line:
                line, tg = line.split("  ##")
                line = line.strip(); tg = tg.strip()
            if line.startswith("@wait"):
                p = line.split()
                self.items.append(("@wait", p[1], len(p) > 2))
            else:
                self.items.append((line, tg))

    def ext(self, lst):
        for x in lst:
            self(x)

    def label(self, name):
        self.items.append((name + ":", None))

    def new_label(self, base):
        Prog.UID[0] += 1
        return f"L_{base}_{Prog.UID[0]}"

    def finalize(self, report=None, fresh=True):
        out = []
        vmq, lgq = [], []
        vdone = ldone = 0
        smem = False
        hist = []
        state = 0
        nops = []

        def emit(text, ins=None, states=1):
            nonlocal state
            out.append(text)
            state += states
            if ins is not None:
                hist.append((state, ins))
                if len(hist) > 40:
                    hist.pop(0)

        def need_states(c):
            req = 0
            cu, cd = set(c.uses), set(c.defs)
            for st, p in hist:
                d = state - st
                if d >= 20:
                    continue
                n = 0
                pd = set(p.defs)
                if p.cls == "valu":
                    vg = {r for r in pd if r[0] in "va"}
                    sg = {r for r in pd if r[0] == "s"}
                    if c.cls == "mfma" and vg & cu:
                        n = max(n, 2)
                    if c.cls == "valu" and vg & cu:
                        if c.dpp or c.op.startswith("v_permlane"):
                            n = max(n, 2)
                        if c.op.startswith(("v_readfirstlane", "v_readlane")):
                            n = max(n, 1)
                        if p.op in TRANS:
                            n = max(n, 1)
                    if sg & cu:
                        if c.cls == "valu":
                            n = max(n, 2)
                        if c.cls in ("vml", "vms"):
                            n = max(n, 5)
                elif p.cls == "mfma":
                    big = p.passes == 8
                    if c.cls == "mfma":
                        if pd & set(c.srcAB):
                            n = max(n, 12 if big else 8)
                        if pd & set(c.srcC):
                            if not (c.srcC == p.defs and c.passes == p.passes):
                                n = max(n, 10 if big else 6)
                        elif pd & cd:
                            n = max(n, 10 if big else 6)
                    elif c.cls in ("valu", "vml", "vms", "dsr", "dsw"):
                        if pd & (cu | cd):
                            n = max(n, 12 if big else 8)
                        if c.cls == "valu" and set(p.srcC) & cd:
                            n = max(n, 7 if big else 3)
                elif p.cls == "salu":
                    if ("s", "m0") in pd and c.lds:
                        n = max(n, 1)
                elif p.cls == "vms" and p.wide:
                    if set(p.srcC) & cd:
                        n = max(n, 2 if c.cls == "valu" else 1)
                req = max(req, n - d)
            return req

        for it in self.items:
            if it[0] == "@wait":
                _, tag, lg0 = it
                idx = [i for i, e in enumerate(vmq) if e[0] == tag]
                assert idx, "no such tag " + tag
                n = len(vmq) - 1 - idx[-1]
                w = []
                if idx[-1] >= vdone:
                    w.append(f"vmcnt({min(n, 63)})")
                    vdone = max(vdone, len(vmq) - min(n, 63))
                if lg0:
                    w.append("lgkmcnt(0)")
                    ldone = len(lgq); smem = False
                if w:
                    emit("s_waitcnt " + " ".join(w))
                continue
            text, tag = it
            if text.endswith(":") or text.startswith((".", ";")):
                out.append(text)
                continue
            c = Ins(text, tag)
            if c.op == "s_waitcnt":
                m = re.search(r"vmcnt\((\d+)\)", text)
                if m:
                    vdone = max(vdone, len(vmq) - int(m.group(1)))
                m = re.search(r"lgkmcnt\((\d+)\)", text)
                if m:
                    n = int(m.group(1))
                    if n == 0:
                        smem = False
                    if not smem:
                        ldone = max(ldone, len(lgq) - n)
                emit(text)
                continue
            if c.op == "s_nop":
                emit(text, None, int(text.split()[1]) + 1)
                continue
            touch = set(c.uses) | set(c.defs)
            w = []
            vi = [i for i in range(vdone, len(vmq)) if vmq[i][1] & touch]
            if vi:
                n = min(len(vmq) - 1 - vi[-1], 63)
                w.append(f"vmcnt({n})")
                vdone = max(vdone, len(vmq) - n)
            li = [i for i in range(ldone, len(lgq)) if lgq[i][1] & touch]
            if li:
                n = 0 if smem else min(len(lgq) - 1 - li[-1], 15)
                w.append(f"lgkmcnt({n})")
                ldone = max(ldone, len(lgq) - n)
                if n == 0:
                    smem = False
            if w:
                emit("s_waitcnt " + " ".join(w))
            r = need_states(c)
            if r > 0:
                nops.append((len(out), r, text))
                while r > 0:
                    k = min(r, 16)
                    emit(f"s_nop {k-1}", None, k)
                    r -= k
            emit(text, c)
            if c.cls in ("vml", "vms"):
                vmq.append((tag, set(c.defs)))
            elif c.cls in ("dsr", "dsw"):
                lgq.append((tag, set(c.defs)))
            elif c.cls == "smem":
                smem = True
                lgq.append((tag, set(c.defs)))
        if report is not None:
            report.extend(nops)
        return out


def text_of(lines):
    out = []
    for l in lines:
        if l.endswith(":") or l.startswith((".", ";")):
            out.append(l)
        else:
            out.append("    " + l)
    return "\n".join(out) + "\n"


TRANSW = 1


def nins(item):
    if not item:
        return 0
    n = 0
    for x in item.split("\n"):
        x = x.strip()
        if x and not x.startswith("@"):
            n += TRANSW if x.startswith(TRANS) else 1
    return n


class Weave:
    def __init__(self):
        self.bb = []
        self.cap = []
        self.pre = []
        self.fill = []
        self.dma = []
        self.used = []

    def add(self, m, cap):
        self.bb.append(m); self.cap.append(cap); self.pre.append([]); self.fill.append([]); self.dma.append(None)
        self.used.append(0)
        return len(self.bb) - 1

    def n(self):
        return len(self.bb)

    def before(self, i, item):
        self.pre[i].append(item)

    def pin(self, i, item):
        if not item:
            return
        self.fill[i].append(item); self.used[i] += nins(item)

    def plan(self, items, lo, counts):
        k = 0
        for i, c in enumerate(counts):
            for _ in range(c):
                if k < len(items):
                    self.pin(lo + i, items[k]); k += 1
        assert k == len(items), (k, len(items))

    def spread(self, items, lo, hi):
        items = [x for x in items if x]
        if not items:
            return
        rem = [max(0, self.cap[i] - self.used[i]) for i in range(lo, hi)]
        tot = sum(rem)
        need = sum(nins(x) for x in items)
        if tot == 0:
            rem = [1] * (hi - lo); tot = hi - lo
        scale = need / tot
        cum = 0.0; placed = 0; k = 0
        for i in range(lo, hi):
            cum += rem[i - lo] * scale
            while k < len(items) and placed + nins(items[k]) / 2.0 <= cum + 1e-9:
                self.pin(i, items[k]); placed += nins(items[k]); k += 1
        while k < len(items):
            self.pin(hi - 1, items[k]); k += 1

    def put_dma(self, units, lo, hi):
        if not units:
            return
        cands = [i for i in range(lo, hi) if self.dma[i] is None and self.cap[i] >= 4]
        assert len(cands) >= len(units), (len(cands), len(units), lo, hi)
        n = len(units)
        for k, u in enumerate(units):
            i = cands[(2 * k + 1) * len(cands) // (2 * n)] if n < len(cands) else cands[k]
            self.dma[i] = u
            self.used[i] += nins(u[0]) + nins(u[1]) + nins(u[2])

    def emit(self, A):
        for i in range(self.n()):
            for x in self.pre[i]:
                A(x)
            if self.bb[i]:
                A(self.bb[i])
            body = list(self.fill[i])
            if self.dma[i] is not None:
                p, l, post = self.dma[i]
                body = ([p] if p else []) + body + [l] + ([post] if post else [])
            for x in body:
                A(x)

    def load_report(self):
        return "".join("%x" % min(u, 15) for u in self.used)
```

```python
from tlib import *

SLOT, UOFF, KVO = 28928, 14464, 16384
SCR = 4 * SLOT
RSTD = SCR
CSX = SCR + 512
RPS = SCR + 512 + 5120
KVX = RPS + 8192
KFX = KVX + 16384
LDS_BYTES = KFX + 2048
assert RPS % 128 == 0 and LDS_BYTES <= 163840

ACT_OFF = 0
ACT_BYTES = 64 * 144 * 1024
KVP_OFF = 0x1000000
KVP_BYTES = 16 * 16 * 4096
FLG_OFF = 0x1500000
FLG_BYTES = 0x10000
F_A = 0x0000
F_O = 0x1000
F_K = 0x2000
EPOCH = 0x3800
F_P = 0x4000
STAT = 0x6000
W2F_OFF = 0x1600000
W2F_BYTES = 1008 * 2048

sX, sQKV, sG, sU, sWS = 4, 6, 8, 10, 12
SRD_FLG = 8
sMT, sNT = 14, 15
SRD_GU, SRD_QKV, SRD_X, SRD_ACT, SRD_KVP = 16, 20, 24, 28, 32
sR, sC, sW = 36, 37, 38
sMW, sMX, sMQ = 39, 40, 41
sOffW, sOffQ, sOffX = 42, 43, 44
sFo = 45
sMQ1 = 46
sMask = 47
sT0, sT1, sT2, sT3 = 48, 49, 50, 51
SRD_RP = 52
sL28 = 52
sLO = 54
sRPo, sRPk = 64, 65
sGid = 66
sTag = 75
SRD_W2 = 76
sW2cur, sW2lo, sW2hi, sW2o = 80, 81, 82, 83
sWOp, sOUTp = 98, 100

vTid, vLane = 0, 1
vDW = 8
vL16 = 15
vDX = 16
vDQ = 20
vW2a, vW2b = 21, 28
vST = 22
vEpoch, vPollK, vPollA = 26, 27, 29
vPF = 30
ACCF = 32
ACCK, ACCV, ACCQ = 144, 160, 176
vXa, vKa = 32, 40
vSD, vRP = 48, 56
vQ = 64
vRPv, vRPr, vSTv = 76, 77, 79
vSTo = 80
vWa = 192
vQa = 200
vM = 204
vCF = 208
vCS = 216
vR2 = 224
vCSw, vCSr, vPollW = 225, 226, 227
vE = 228
PK = 240
vPB, vPC, vPW = 248, 249, 250
aX = 0
aWf = 112
aCS = 168
aQf = 196
aCSQ = 212
aSEL = 216

OPT = {}
PAR = {"cap": 6, "capA": 7,
       "sts": 2, "rpl": 2, "rps": 3, "pubP": 14, "ldS": 18, "chkS": 27, "kv0": 28, "kvw": 39,
       "pubK": 47, "polK": 55, "polW": 31, "chkW": 39, "w2a": 40, "w2b": 46,
       "pfB": 6, "pfC": 31, "pfW": 35, "f0": 0, "fstep": 4}


def accF(t):
    return ACCF + 16 * t


def wf(b, t):
    return aWf + 28 * b + 4 * t


def kf(n, t):
    return aWf + 8 * (n % 4) + 4 * t


def qf(i):
    return aQf + 4 * (i % 4)


def xf(j, p):
    return aX + 4 * (4 * j + p)


def w2reg(q):
    if q < 4:
        return lambda ns: a(220 + 8 * q + 4 * ns, 4)
    if q < 8:
        return lambda ns: v(ACCK + 8 * (q - 4) + 4 * ns, 4)
    if q < 15:
        return lambda ns: a(aWf + 8 * (q - 8) + 4 * ns, 4)
    if q < 18:
        return lambda ns: a(aCS + 8 * (q - 15) + 4 * ns, 4)
    if q < 32:
        return lambda ns: a(8 * (q - 18) + 4 * ns, 4)
    if q < 35:
        return lambda ns: a(192 + 8 * (q - 32) + 4 * ns, 4)
    return lambda ns: a(216 if ns == 0 else 252, 4)


KP = 32


def kvp_loads():
    L = [f"s_lshl_b32 s{sT0}, s{sC}, 16\ns_lshl_b32 s{sT1}, s{sW}, 10\ns_add_u32 s{sRPo}, s{sT0}, s{sT1}"]
    for p in range(16):
        L.append(f"buffer_load_dwordx4 {v(KP+4*p,4)}, v{vL16}, {s(SRD_KVP,4)}, s{sRPo} offen sc1" +
                 (f"\ns_add_u32 s{sRPo}, s{sRPo}, 4096" if p < 15 else ""))
    return L


def readsA(n):
    j, p = divmod(n, 4)
    sl = j % 4
    st, lo = sl >> 1, (sl & 1) * SLOT
    R = [f"ds_read_b128 {a(xf(j,p),4)}, v{vXa+4*st+p} offset:{lo}"]
    for t in range(2):
        for h in range(2):
            R.append(f"ds_read_b64_tr_b16 {a(kf(n,t)+2*h,2)}, v{vKa+4*st+p} offset:{lo+1024*t+256*h}")
    return R


def readsB(n):
    g, p = divmod(n, 4)
    sl = g % 4
    st, lo = sl >> 1, (sl & 1) * SLOT
    R = []
    for t in range(7):
        for h in range(2):
            R.append(f"ds_read_b64_tr_b16 {a(wf(p&1,t)+2*h,2)}, v{vWa+4*st+p} offset:{lo+32*t+896*h}")
    return R


def readsC(i):
    jj, p = divmod(i, 4)
    return [f"ds_read_b64_tr_b16 {a(qf(i)+2*h,2)}, v{vQa+p} offset:{4096*jj+256*h}" for h in range(2)]


def mf(D, A_, B_, first):
    return f"v_mfma_f32_32x32x16_bf16 {D}, {A_}, {B_}, {'0' if first else D}"


def m16(reg, frag, first):
    D = a(reg, 4)
    return f"v_mfma_f32_16x16x32_bf16 {D}, {a(aSEL,4)}, {frag}, {'0' if first else D}"


def group_units(g):
    base = (g % 4) * SLOT
    U = []
    if g < 7:
        X = []
        for uu in range(4):
            post = f"s_add_u32 s{sOffX}, s{sOffX}, 128" if (uu == 3 and g < 6) else ""
            X.append((f"s_add_u32 m0, s{sMX}, {base+1024*uu}",
                      f"buffer_load_dwordx4 v{vDX+uu}, {s(SRD_X,4)}, s{sOffX} offen lds  ##G{g}", post))
        K = []
        for t in range(2):
            post = ""
            if t == 1:
                post = (f"s_add_u32 s{sOffQ}, s{sOffQ}, {64*2688}" if g < 6 else
                        f"s_sub_u32 s{sOffQ}, s{sOffQ}, {6*64*2688}")
            K.append((f"s_add_u32 m0, s{sMQ}, {base+KVO+1024*t-896*(t+1)}",
                      f"buffer_load_dwordx4 v{vDQ}, {s(SRD_QKV,4)}, s{sOffQ} offen offset:{896*(t+1)} lds  ##G{g}", post))
        U = [X[0], K[0], X[1], X[2], K[1], X[3]]
    elif g < 14:
        for u in range(7):
            post = f"s_add_u32 s{sOffW}, s{sOffW}, {64*3584}" if (u == 6 and g < 13) else ""
            U.append((f"s_add_u32 m0, s{sMW}, {base+1024*u}",
                      f"buffer_load_dwordx4 v{vDW+u}, {s(SRD_GU,4)}, s{sOffW} offen lds  ##G{g}", post))
    else:
        for i in range(7):
            post = f"s_add_u32 s{sOffQ}, s{sOffQ}, {64*2688}" if i < 6 else ""
            U.append((f"s_add_u32 m0, s{sMQ1}, {base+4096*i}",
                      f"buffer_load_dwordx4 v{vDQ}, {s(SRD_QKV,4)}, s{sOffQ} offen lds  ##G{g}", post))
    return U


def unit_item(u):
    return "\n".join(x for x in u if x)


def emit_units(A, U):
    for u in U:
        A(unit_item(u))


def prologue(A, exit_label, stamp):
    A(f"s_cmp_ge_u32 s2, 256")
    A(f"s_cbranch_scc1 {exit_label}")
    A(f"s_load_dwordx4 {s(sX,4)}, s[0:1], 0")
    A(f"s_load_dwordx4 {s(sG,4)}, s[0:1], 32")
    A(f"s_load_dwordx2 {s(sWS,2)}, s[0:1], 72")
    A(f"s_load_dwordx4 {s(SRD_W2,4)}, s[0:1], 48")
    A(f"s_load_dwordx2 {s(sWOp,2)}, s[0:1], 16")
    A(f"v_and_b32 v{vLane}, 63, v{vTid}")
    stamp(A, 0)
    A(f"v_lshrrev_b32 v2, 6, v{vTid}")
    A(f"s_and_b32 s{sT0}, s2, 1")
    A(f"s_lshl_b32 s{sT0}, s{sT0}, 3")
    A(f"s_bfe_u32 s{sT1}, s2, 0x30003")
    A(f"s_add_u32 s{sR}, s{sT0}, s{sT1}")
    A(f"v_readfirstlane_b32 s{sW}, v2")
    A(f"s_bfe_u32 s{sT0}, s2, 0x20001")
    A(f"s_lshl_b32 s{sT0}, s{sT0}, 2")
    A(f"s_lshr_b32 s{sT2}, s2, 6")
    A(f"s_add_u32 s{sC}, s{sT0}, s{sT2}")
    A(f"s_mov_b32 s{sMask}, 0xffff0000")
    task_setup_pre(A)
    A(f"v_lshrrev_b32 v6, 3, v{vLane}")
    A(f"v_mul_u32_u24 v6, 896, v6")
    A(f"s_lshl_b32 s{sT0}, s{sR}, 2")
    A(f"s_add_u32 s{sT0}, s{sT0}, s{sW}")
    A(f"s_mul_i32 s{sT0}, s{sT0}, {32*896}")
    A(f"v_add_u32 v6, s{sT0}, v6")
    A(f"v_lshrrev_b32 v7, 4, v{vLane}")
    A(f"v_xor_b32 v7, v7, v{vLane}")
    A(f"v_and_b32 v7, 7, v7")
    A(f"v_lshlrev_b32 v7, 4, v7")
    for uu in range(4):
        d = vDX + uu
        if uu & 1:
            A(f"v_xor_b32 v{d}, 64, v7")
            A(f"v_add_u32 v{d}, v{d}, v6")
        else:
            A(f"v_add_u32 v{d}, v7, v6")
        if uu:
            A(f"v_add_u32 v{d}, {uu*8*896}, v{d}")
    A(f"v_lshrrev_b32 v2, 2, v{vLane}")
    A(f"v_mul_u32_u24 v2, 2688, v2")
    A(f"v_and_b32 v3, 3, v{vLane}")
    A(f"v_lshl_add_u32 v2, v3, 4, v2")
    A(f"s_mul_i32 s{sT0}, s{sC}, 56")
    A(f"v_add_u32 v{vDQ}, s{sT0}, v2")
    A(f"s_lshr_b32 s{sT0}, s{sW}, 1")
    A(f"s_and_b32 s{sT1}, s{sW}, 1")
    A(f"s_mul_i32 s{sMW}, s{sT0}, {UOFF}")
    A(f"s_mul_i32 s{sT2}, s{sT1}, 7168")
    A(f"s_add_u32 s{sMW}, s{sMW}, s{sT2}")
    A(f"s_lshl_b32 s{sMX}, s{sW}, 12")
    A(f"s_lshl_b32 s{sMQ}, s{sW}, 11")
    A(f"s_lshl_b32 s{sMQ1}, s{sW}, 10")
    A(f"s_mul_i32 s{sOffW}, s{sT1}, {32*3584}")
    A(f"s_mul_i32 s{sT2}, s{sC}, 224")
    A(f"s_add_u32 s{sOffW}, s{sOffW}, s{sT2}")
    A(f"s_mov_b32 s{sOffX}, 0")
    A(f"s_mul_i32 s{sOffQ}, s{sW}, {16*2688}")
    A(f"v_lshlrev_b32 v{vL16}, 4, v{vLane}")
    pfa = pf_setup_a(A)
    stamp(A, ("p", 0))
    A("s_waitcnt lgkmcnt(0)")
    srd(A, SRD_X, sX, 2048 * 896)
    st_issue(A)
    srd(A, SRD_QKV, sQKV, 448 * 2688)
    emit_units(A, group_units(0))
    A(f"s_lshr_b32 s{sT0}, s{sW}, 1")
    A(f"s_cmp_eq_u32 s{sT0}, 1")
    A(f"s_cselect_b32 s{SRD_GU}, s{sU}, s{sG}")
    A(f"s_cselect_b32 s{SRD_GU+1}, s{sU+1}, s{sG+1}")
    A(f"s_and_b32 s{SRD_GU+1}, s{SRD_GU+1}, 0xffff")
    A(f"s_mov_b32 s{SRD_GU+2}, {448*3584}")
    A(f"s_mov_b32 s{SRD_GU+3}, 0x20000")
    srd(A, SRD_FLG, sWS, FLG_BYTES, FLG_OFF)
    A(f"v_mov_b32 v2, {EPOCH}")
    A(f"buffer_load_dword v{vEpoch}, v2, {s(SRD_FLG,4)}, 0 offen sc1")
    A(f"s_cmp_eq_u32 s{sRPk}, 1")
    A(f"s_cselect_b32 s{SRD_RP}, s{SRD_W2}, s{sWOp}")
    A(f"s_cselect_b32 s{SRD_RP+1}, s{SRD_W2+1}, s{sWOp+1}")
    A(f"s_mov_b32 s{SRD_RP+2}, {448*896}")
    A(f"s_cselect_b32 s{SRD_RP+2}, {1792*896}, s{SRD_RP+2}")
    A(f"s_and_b32 s{SRD_RP+1}, s{SRD_RP+1}, 0xffff")
    A(f"s_mov_b32 s{SRD_RP+3}, 0x20000")
    rp_issue(A)
    stamp(A, ("p", 1))
    emit_units(A, group_units(1))
    for x in pfa:
        A(x)
    stamp(A, ("p", 2))
    A(f"s_mov_b32 s{sOUTp}, s{SRD_W2+2}")
    A(f"s_mov_b32 s{sOUTp+1}, s{SRD_W2+3}")
    srd(A, SRD_W2, sWS, W2F_BYTES, W2F_OFF)
    srd(A, SRD_ACT, sWS, ACT_BYTES, ACT_OFF)
    srd(A, SRD_KVP, sWS, KVP_BYTES, KVP_OFF)
    A(f"s_and_b32 s{sT0}, s2, 7")
    A(f"s_lshl_b32 s{sT0}, s{sT0}, 2")
    A(f"s_bfe_u32 s{sT1}, s2, 0x20003")
    A(f"s_add_u32 s{sMT}, s{sT0}, s{sT1}")
    A(f"s_lshr_b32 s{sNT}, s2, 5")
    task_setup_post(A)
    for u in range(7):
        d = vDW + u
        A(f"v_add_u32 v3, {64*u}, v{vLane}")
        A(f"v_mul_u32_u24 v4, 4682, v3")
        A(f"v_lshrrev_b32 v4, 16, v4")
        A(f"v_mul_u32_u24 v5, 14, v4")
        A(f"v_sub_u32 v5, v3, v5")
        A(f"v_mul_u32_u24 v4, 3584, v4")
        A(f"v_lshl_add_u32 v{d}, v5, 4, v4")
    for q in range(448):
        assert (q * 4682) >> 16 == q // 14
    A(f"v_lshrrev_b32 v2, 5, v{vLane}")
    A(f"v_lshlrev_b32 v3, 3, v2")
    A(f"v_bfe_u32 v5, v{vLane}, 2, 2")
    A(f"v_add_u32 v3, v3, v5")
    A(f"v_bfe_u32 v4, v{vLane}, 4, 1")
    A(f"v_and_b32 v5, 3, v{vLane}")
    A(f"v_lshlrev_b32 v5, 3, v5")
    A(f"v_mul_u32_u24 v6, 224, v3")
    A(f"v_mul_u32_u24 v7, {UOFF}, v4")
    A(f"v_add3_u32 v6, v6, v7, v5")
    A(f"v_lshlrev_b32 v7, 6, v3")
    A(f"v_lshl_add_u32 v7, v4, 5, v7")
    A(f"v_add_u32 v7, v7, v5")
    A(f"v_and_b32 v3, 31, v{vLane}")
    A(f"v_bfe_u32 v4, v{vLane}, 1, 3")
    A(f"v_lshlrev_b32 v3, 7, v3")
    for p in range(4):
        A(f"s_add_u32 s{sT0}, s{sW}, {p}")
        A(f"s_and_b32 s{sT0}, s{sT0}, 3")
        A(f"s_mul_i32 s{sT1}, s{sT0}, 3584")
        A(f"v_add_u32 v{vWa+p}, s{sT1}, v6")
        A(f"v_add_u32 v{vWa+4+p}, {2*SLOT}, v{vWa+p}")
        A(f"s_lshl_b32 s{sT1}, s{sT0}, 11")
        A(f"s_add_u32 s{sT1}, s{sT1}, {KVO}")
        A(f"v_add_u32 v{vKa+p}, s{sT1}, v7")
        A(f"v_add_u32 v{vKa+4+p}, {2*SLOT}, v{vKa+p}")
        A(f"s_lshl_b32 s{sT1}, s{sT0}, 10")
        A(f"s_add_u32 s{sT1}, s{sT1}, {(14 % 4) * SLOT}")
        A(f"v_add_u32 v{vQa+p}, s{sT1}, v7")
        A(f"s_lshl_b32 s{sT0}, s{sT0}, 1")
        A(f"v_add_u32 v5, s{sT0}, v2")
        A(f"v_xor_b32 v5, v5, v4")
        A(f"v_lshl_add_u32 v5, v5, 4, v3")
        A(f"v_add_u32 v{vXa+p}, s{sMX}, v5")
        A(f"v_add_u32 v{vXa+4+p}, {2*SLOT}, v{vXa+p}")
    A(f"v_lshrrev_b32 v2, 2, v{vLane}")
    A(f"v_lshrrev_b32 v3, 4, v{vLane}")
    A(f"v_xor_b32 v2, v2, v3")
    A(f"v_and_b32 v2, 1, v2")
    A(f"v_cmp_eq_u32 vcc, 0, v2")
    A(f"v_mov_b32 v3, 0x3f803f80")
    A(f"v_mov_b32 v4, 0")
    A(f"v_cndmask_b32 v3, v4, v3, vcc")
    for i in range(4):
        A(f"v_accvgpr_write_b32 a{aSEL+i}, v3")
    A(f"v_and_b32 v2, 31, v{vLane}")
    A(f"v_lshlrev_b32 v2, 4, v2")
    A(f"v_add_u32 v{vCSr}, {CSX}, v2")
    A(f"s_lshl_b32 s{sT0}, s{sW}, 2")
    A(f"v_add_u32 v{vCSw}, s{sT0}, v{vCSr}")
    A(f"s_lshr_b32 s{sT0}, s{sW}, 1")
    A(f"s_lshl_b32 s{sT0}, s{sT0}, 10")
    A(f"s_sub_u32 s{sT1}, 1024, s{sT0}")
    A(f"v_add_u32 v{vW2a}, s{sT0}, v{vL16}")
    A(f"v_add_u32 v{vW2b}, s{sT1}, v{vL16}")
    A(f"s_min_u32 s{sT0}, s{sNT}, 7")
    A(f"s_mul_i32 s{sT0}, s{sT0}, {144*2048}")
    A(f"s_mul_i32 s{sT1}, s{sW}, {28*2048}")
    A(f"s_add_u32 s{sW2lo}, s{sT0}, s{sT1}")
    A(f"s_add_u32 s{sW2hi}, s{sW2lo}, {28*2048}")
    A(f"s_lshl_b32 s{sT1}, s{sW}, 14")
    A(f"s_add_u32 s{sW2o}, s{sT0}, s{sT1}")
    A(f"s_add_u32 s{sW2o}, s{sW2o}, {112*2048}")
    A(f"s_lshl_b32 s{sT1}, s{sNT}, 13")
    A(f"s_cmp_eq_u32 s{sNT}, 7")
    A(f"s_cselect_b32 s{sT1}, 0, s{sT1}")
    A(f"s_add_u32 s{sW2cur}, s{sW2lo}, s{sT1}")
    poll_addr_w(A, vPollW, 2)
    poll_addr_k(A, vPollK)
    A(f"s_lshl_b32 s{sT0}, s{sR}, 2")
    A(f"s_add_u32 s{sT0}, s{sT0}, s{sW}")
    A(f"s_mul_i32 s{sT0}, s{sT0}, 144")
    A(f"s_mul_i32 s{sT1}, s{sC}, 7")
    A(f"s_add_u32 s{sT0}, s{sT0}, s{sT1}")
    A(f"s_lshl_b32 s{sFo}, s{sT0}, 10")
    pf_setup_b(A)
    A(f"v_cmp_gt_u32 {s(sLO,2)}, 32, v{vLane}")
    stamp(A, ("p", 3))
    for x in st_items():
        A(x)
    stamp(A, ("p", 4))


def pf_setup_a(A):
    if OPT.get("nopf"):
        return []
    A(f"s_lshr_b32 s{sT0}, s2, 3")
    A(f"s_lshl_b32 s{sT0}, s{sT0}, 2")
    A(f"s_add_u32 s{sT0}, s{sT0}, s{sW}")
    A(f"s_lshl_b32 s{sT1}, s{sT0}, 3")
    A(f"v_lshrrev_b32 v2, 3, v{vLane}")
    A(f"v_add_u32 v2, s{sT1}, v2")
    A(f"v_and_b32 v3, 7, v{vLane}")
    A(f"s_and_b32 s{sT1}, s2, 1")
    A(f"s_lshl_b32 s{sT1}, s{sT1}, 10")
    A(f"v_add_u32 v4, s{sT1}, v2")
    A(f"v_mul_u32_u24 v4, 896, v4")
    A(f"v_lshl_add_u32 v4, v3, 7, v4")
    A(f"v_mov_b32 v5, 0x40000000")
    A(f"v_subrev_u32 v6, 2, v3")
    A(f"v_cmp_gt_u32 vcc, 5, v6")
    A(f"v_cndmask_b32 v{vPF}, v5, v4, vcc")
    A(f"v_min_u32 v6, 2, v3")
    A(f"v_mul_u32_u24 v2, 3, v2")
    A(f"v_add_u32 v2, v2, v6")
    A(f"v_mul_u32_u24 v4, 10923, v2")
    A(f"v_lshrrev_b32 v4, 16, v4")
    A(f"v_mul_u32_u24 v6, 6, v4")
    A(f"v_sub_u32 v6, v2, v6")
    A(f"v_cmp_lt_u32 {s(sT2,2)}, 2, v6")
    A(f"v_add_u32 v4, 128, v4")
    A(f"v_mul_u32_u24 v4, 2688, v4")
    A(f"v_lshlrev_b32 v7, 7, v6")
    A(f"v_add_u32 v4, v4, v7")
    A(f"v_add_u32 v7, {896-384}, v4")
    A(f"v_cndmask_b32 v4, v4, v7, {s(sT2,2)}")
    A(f"s_bfe_u32 s{sT0}, s2, 0x20001")
    A(f"s_mul_i32 s{sT0}, s{sT0}, 224")
    A(f"s_add_u32 s{sT0}, s{sT0}, 896")
    A(f"s_and_b32 s{sT0}, s{sT0}, 0xffffff80")
    A(f"v_add_u32 v4, s{sT0}, v4")
    A(f"v_cndmask_b32 v4, v4, v5, vcc")
    A(f"v_cmp_gt_u32 vcc, 1920, v2")
    A(f"v_cndmask_b32 v{vPF+1}, v5, v4, vcc")
    for x in range(3072):
        assert (x * 10923) >> 16 == x // 6
    return [f"buffer_load_dword v{vPF}, v{vPF}, {s(SRD_X,4)}, 0 offen",
            f"buffer_load_dword v{vPF+1}, v{vPF+1}, {s(SRD_QKV,4)}, 0 offen"]


def pf_setup_b(A):
    if OPT.get("nopf"):
        return
    A(f"s_lshr_b32 s{sT0}, s2, 3")
    A(f"s_lshl_b32 s{sT0}, s{sT0}, 1")
    A(f"s_and_b32 s{sT1}, s{sW}, 1")
    A(f"s_add_u32 s{sT0}, s{sT0}, s{sT1}")
    A(f"s_lshl_b32 s{sT0}, s{sT0}, 6")
    A(f"v_add_u32 v2, s{sT0}, v{vLane}")
    A(f"v_mul_u32_u24 v3, 9363, v2")
    A(f"v_lshrrev_b32 v3, 16, v3")
    A(f"v_mul_u32_u24 v4, 7, v3")
    A(f"v_sub_u32 v4, v2, v4")
    A(f"v_mul_u32_u24 v3, 3584, v3")
    A(f"v_lshl_add_u32 v3, v4, 7, v3")
    A(f"s_bfe_u32 s{sT0}, s2, 0x20001")
    A(f"s_mul_i32 s{sT1}, s{sT0}, 896")
    A(f"v_add_u32 v{vPB}, s{sT1}, v3")
    for x in range(4096):
        assert (x * 9363) >> 16 == x // 7
    A(f"s_lshr_b32 s{sT1}, s2, 3")
    A(f"s_lshl_b32 s{sT1}, s{sT1}, 2")
    A(f"s_add_u32 s{sT1}, s{sT1}, s{sW}")
    A(f"s_lshl_b32 s{sT1}, s{sT1}, 4")
    A(f"v_add_u32 v2, s{sT1}, v{vLane}")
    A(f"v_mul_u32_u24 v3, 21846, v2")
    A(f"v_lshrrev_b32 v3, 16, v3")
    A(f"v_mul_u32_u24 v4, 3, v3")
    A(f"v_sub_u32 v4, v2, v4")
    A(f"v_mul_u32_u24 v3, 2688, v3")
    A(f"v_lshl_add_u32 v3, v4, 7, v3")
    A(f"s_mul_i32 s{sT0}, s{sT0}, 224")
    A(f"s_and_b32 s{sT0}, s{sT0}, 0xffffff80")
    A(f"v_add_u32 v3, s{sT0}, v3")
    A(f"v_mov_b32 v4, 0x40000000")
    A(f"v_cmp_gt_u32 vcc, 16, v{vLane}")
    A(f"v_cndmask_b32 v{vPC}, v4, v3, vcc")
    for x in range(2200):
        assert (x * 21846) >> 16 == x // 3
    A(f"s_lshr_b32 s{sT0}, s2, 3")
    A(f"s_lshl_b32 s{sT0}, s{sT0}, 5")
    A(f"s_lshl_b32 s{sT1}, s{sW}, 3")
    A(f"s_add_u32 s{sT0}, s{sT0}, s{sT1}")
    A(f"s_lshl_b32 s{sT0}, s{sT0}, 11")
    A(f"v_lshlrev_b32 v2, 7, v{vLane}")
    A(f"v_add_u32 v{vPW}, s{sT0}, v2")


def rp_issue(A):
    A(f"s_lshl_b32 m0, s{sW}, 11")
    A(f"s_add_u32 m0, m0, {RPS}")
    l = f"buffer_load_dwordx4 v{vRPv}, {s(SRD_RP,4)}, s{sRPo} offen lds  ##rpl"
    A(l)
    A(f"s_add_u32 m0, m0, 1024")
    A(f"s_add_u32 s{sRPo}, s{sRPo}, 7168")
    A(l)


def st_issue(A):
    A(f"s_mul_i32 s{sT0}, s{sGid}, {2*896}")
    for o, r in ((0, vSD), (896, vSD + 4)):
        A(f"buffer_load_dwordx4 {v(r,4)}, v{vSTv}, {s(SRD_X,4)}, s{sT0} offen offset:{o}")


def task_setup_pre(A):
    A(f"s_lshl_b32 s{sGid}, s{sR}, 6")
    A(f"s_lshl_b32 s{sT0}, s{sC}, 2")
    A(f"s_add_u32 s{sGid}, s{sGid}, s{sT0}")
    A(f"s_add_u32 s{sGid}, s{sGid}, s{sW}")
    A(f"s_mul_i32 s{sT0}, s{sGid}, 7282")
    A(f"s_lshr_b32 s{sT0}, s{sT0}, 20")
    A(f"s_mul_i32 s{sT1}, s{sT0}, 144")
    A(f"s_sub_u32 s{sT1}, s{sGid}, s{sT1}")
    A(f"s_sub_u32 s{sT2}, s{sT1}, 112")
    A(f"s_lshr_b32 s{sT3}, s{sT2}, 1")
    A(f"s_mul_i32 s{sT3}, s{sT3}, 28")
    A(f"s_and_b32 s{sT2}, s{sT2}, 1")
    A(f"s_lshl_b32 s{sT2}, s{sT2}, 4")
    A(f"s_add_u32 s{sT3}, s{sT3}, s{sT2}")
    A(f"s_lshl_b32 s{sT2}, s{sT1}, 4")
    A(f"s_cmp_lt_u32 s{sT1}, 112")
    A(f"s_cselect_b32 s{sRPo}, s{sT2}, s{sT3}")
    A(f"s_cselect_b32 s{sRPk}, 1, 0")
    A(f"s_mul_i32 s{sRPo}, s{sRPo}, 896")
    t = vQ
    A(f"v_lshrrev_b32 v{t}, 3, v{vLane}")
    A(f"v_mul_u32_u24 v{t+1}, 896, v{t}")
    A(f"v_bfe_u32 v{t+2}, v{vLane}, 4, 1")
    A(f"v_lshlrev_b32 v{t+2}, 2, v{t+2}")
    A(f"v_and_b32 v{t+3}, 7, v{vLane}")
    A(f"v_xor_b32 v{t+3}, v{t+3}, v{t+2}")
    A(f"v_lshlrev_b32 v{t+3}, 4, v{t+3}")
    A(f"s_lshl_b32 s{sT0}, s{sT0}, 7")
    A(f"v_add3_u32 v{vRPv}, v{t+1}, v{t+3}, s{sT0}")
    A(f"v_lshlrev_b32 v{t+1}, 4, v{vLane}")
    A(f"v_mov_b32 v{t}, 0x40000000")
    A(f"v_cmp_gt_u32 vcc, 56, v{vLane}")
    A(f"v_cndmask_b32 v{vSTv}, v{t}, v{t+1}, vcc")


def task_setup_post(A):
    t = vQ
    A(f"v_lshrrev_b32 v{t}, 5, v{vLane}")
    A(f"v_lshlrev_b32 v{t}, 2, v{t}")
    A(f"v_bfe_u32 v{t+1}, v{vLane}, 2, 2")
    A(f"v_add_u32 v{t}, v{t}, v{t+1}")
    A(f"v_lshlrev_b32 v{t}, 7, v{t}")
    A(f"v_bfe_u32 v{t+1}, v{vLane}, 4, 1")
    A(f"v_lshlrev_b32 v{t+1}, 1, v{t+1}")
    A(f"v_bfe_u32 v{t+2}, v{vLane}, 1, 1")
    A(f"v_add_u32 v{t+1}, v{t+1}, v{t+2}")
    A(f"v_bfe_u32 v{t+2}, v{vLane}, 3, 1")
    A(f"v_lshlrev_b32 v{t+2}, 2, v{t+2}")
    A(f"v_xor_b32 v{t+1}, v{t+1}, v{t+2}")
    A(f"v_lshl_add_u32 v{t}, v{t+1}, 4, v{t}")
    A(f"v_and_b32 v{t+1}, 1, v{vLane}")
    A(f"v_lshl_add_u32 v{t}, v{t+1}, 3, v{t}")
    A(f"s_lshl_b32 s{sT0}, s{sW}, 11")
    A(f"s_add_u32 s{sT0}, s{sT0}, {RPS}")
    A(f"v_add_u32 v{vRPr}, s{sT0}, v{t}")
    A(f"v_xor_b32 v{vRPr+1}, 64, v{vRPr}")


def rp_items():
    L = ["@wait rpl\n" + "\n".join(
        f"ds_read_b64_tr_b16 {v(vRP+4*ns+2*part,2)}, v{vRPr+ns} offset:{1024*part}" for ns in range(2) for part in range(2))]
    S = [f"s_lshl_b32 s{sT0}, s{sGid}, 11\n" +
         "\n".join(f"buffer_store_dwordx4 {v(vRP+4*ns,4)}, v{vL16}, {s(SRD_W2,4)}, s{sT0} offen offset:{1024*ns} sc1  ##rps"
                   for ns in range(2))]
    return L, S


def bf16_round_items(dst, src):
    return [f"v_cvt_pk_bf16_f32 v{dst}, v{src}, v{src}", f"v_and_b32 v{dst}, s{sMask}, v{dst}"]


def st_items():
    L = []
    S, Q_ = [vQ, vQ + 2], [vQ + 1, vQ + 3]
    S2, Q2 = [vQ + 4, vQ + 6], [vQ + 5, vQ + 7]
    lo, hi = vQ + 8, vQ + 9
    lo2, hi2 = vQ + 10, vQ + 11
    for row in range(2):
        for i in range(4):
            l, h = (lo, hi) if i & 1 == 0 else (lo2, hi2)
            r = vSD + 4 * row + i
            L.append(f"v_lshlrev_b32 v{l}, 16, v{r}")
            L.append(f"v_and_b32 v{h}, s{sMask}, v{r}")
            if i == 0:
                L.append(f"v_mov_b32 v{S[row]}, v{l}")
                L.append(f"v_mov_b32 v{S2[row]}, v{h}")
                L.append(f"v_mul_f32 v{Q_[row]}, v{l}, v{l}")
                L.append(f"v_mul_f32 v{Q2[row]}, v{h}, v{h}")
            else:
                L.append(f"v_add_f32 v{S[row]}, v{S[row]}, v{l}")
                L.append(f"v_add_f32 v{S2[row]}, v{S2[row]}, v{h}")
                L.append(f"v_fmac_f32 v{Q_[row]}, v{l}, v{l}")
                L.append(f"v_fmac_f32 v{Q2[row]}, v{h}, v{h}")
    for row in range(2):
        L.append(f"v_add_f32 v{S[row]}, v{S[row]}, v{S2[row]}")
        L.append(f"v_add_f32 v{Q_[row]}, v{Q_[row]}, v{Q2[row]}")
    L.append(f"v_permlane32_swap_b32 v{S[0]}, v{S[1]}")
    L.append(f"v_permlane32_swap_b32 v{Q_[0]}, v{Q_[1]}")
    L.append(f"v_add_f32 v{S[0]}, v{S[0]}, v{S[1]}")
    L.append(f"v_add_f32 v{Q_[0]}, v{Q_[0]}, v{Q_[1]}")
    L.append(f"v_permlane16_swap_b32 v{S[0]}, v{Q_[0]}")
    T, U = S[0], Q_[0]
    L.append(f"v_add_f32 v{T}, v{T}, v{U}")
    for dpp in ("quad_perm:[1,0,3,2]", "quad_perm:[2,3,0,1]", "row_half_mirror", "row_mirror"):
        L.append(f"v_add_f32_dpp v{T}, v{T}, v{T} {dpp} row_mask:0xf bank_mask:0xf")
    L.append(f"v_mov_b32 v{U}, v{T}")
    L.append(f"v_permlane16_swap_b32 v{T}, v{U}")
    t0, t1 = vSTo, vSTo + 1
    inv = "0x3b124925"
    L.append(f"v_mul_f32 v{t0}, {inv}, v{T}")
    L.append(f"v_mul_f32 v{t1}, {inv}, v{U}")
    L.append(f"v_fma_f32 v{t1}, -v{t0}, v{t0}, v{t1}")
    L.append(f"v_max_f32 v{t1}, 0, v{t1}")
    L += bf16_round_items(t1, t1)
    L.append(f"v_add_f32 v{t1}, 0x3727c5ac, v{t1}")
    L += bf16_round_items(t1, t1)
    L.append(f"v_sqrt_f32 v{t1}, v{t1}")
    L.append(f"v_xor_b32 v{t0}, 0x80000000, v{t0}")
    L += bf16_round_items(t1, t1)
    L.append(f"v_rcp_f32 v{t1}, v{t1}")
    L.append(f"v_cvt_pk_bf16_f32 v{t0}, v{t0}, v{t0}")
    L.append(f"v_lshrrev_b32 v{vSTo+4}, 5, v{vLane}")
    L.append(f"v_lshlrev_b32 v{vSTo+4}, 4, v{vSTo+4}")
    L.append(tag_compute())
    L.append(f"v_mov_b32 v{vSTo+2}, s{sTag}")
    L.append(f"v_mov_b32 v{vSTo+3}, s{sTag}")
    return L


def st_store():
    return (f"s_lshl_b32 s{sT0}, s{sGid}, 5\ns_add_u32 s{sT0}, s{sT0}, {STAT}\n"
            f"s_mov_b32 exec_lo, 1\ns_mov_b32 exec_hi, 1\n"
            f"buffer_store_dwordx4 {v(vSTo,4)}, v{vSTo+4}, {s(SRD_FLG,4)}, s{sT0} offen sc1  ##sts\ns_mov_b64 exec, -1")


def st_load(dst_addr=2):
    return (f"v_and_b32 v{dst_addr}, 31, v{vLane}\nv_lshlrev_b32 v{dst_addr}, 4, v{dst_addr}\n"
            f"s_lshl_b32 s{sT0}, s{sR}, 2\ns_add_u32 s{sT0}, s{sT0}, s{sW}\ns_lshl_b32 s{sT0}, s{sT0}, 9\n"
            f"s_add_u32 s{sT0}, s{sT0}, {STAT}\n"
            f"buffer_load_dwordx4 {v(vST,4)}, v{dst_addr}, {s(SRD_FLG,4)}, s{sT0} offen sc1")


def st_check(side, spin_max=200000):
    slow, ok = Prog().new_label("slowS"), Prog().new_label("okS")

    def emit_slow(B):
        B.label(slow)
        B(f"s_mov_b32 s{sT3}, 0")
        lab = B.new_label("spinS")
        B.label(lab)
        B(st_load())
        B(f"s_add_u32 s{sT3}, s{sT3}, 1")
        B("s_waitcnt vmcnt(0)")
        B(f"v_cmp_ne_u32 vcc, s{sTag}, v{vST+2}")
        B(f"s_cbranch_vccz {ok}")
        B(f"s_cmp_lt_u32 s{sT3}, {spin_max}")
        B(f"s_cbranch_scc1 {lab}")
        B(f"s_branch {ok}")
    side.append(emit_slow)
    return f"v_cmp_ne_u32 vcc, s{sTag}, v{vST+2}\ns_nop 0\ns_cbranch_vccnz {slow}\n{ok}:"


def tag_compute():
    return (f"v_readfirstlane_b32 s{sTag}, v{vEpoch}\ns_mul_i32 s{sTag}, s{sTag}, 0x9e3779b1\n"
            f"s_add_u32 s{sTag}, s{sTag}, 0x7f4a7c15")


def flag_store(soff_reg, tmp=2):
    return (f"v_mov_b32 v{tmp}, s{soff_reg}\nv_mov_b32 v{tmp+1}, s{sTag}\ns_mov_b64 exec, 1\n"
            f"buffer_store_dword v{tmp+1}, v{tmp}, {s(SRD_FLG,4)}, 0 offen sc1\ns_mov_b64 exec, -1")


def poll_addr_w(A, dst, tmp):
    A(f"s_min_u32 s{sT0}, s{sNT}, 6")
    A(f"s_mul_i32 s{sT0}, s{sT0}, 144")
    A(f"s_mul_i32 s{sT1}, s{sW}, 28")
    A(f"s_add_u32 s{sT1}, s{sT1}, s{sT0}")
    A(f"s_lshl_b32 s{sT2}, s{sW}, 3")
    A(f"s_add_u32 s{sT2}, s{sT2}, s{sT0}")
    A(f"s_add_u32 s{sT2}, s{sT2}, {112-28}")
    A(f"v_mov_b32 v{dst}, s{sT1}")
    A(f"v_mov_b32 v{tmp}, s{sT2}")
    A(f"v_cmp_gt_u32 vcc, 28, v{vLane}")
    A(f"v_cndmask_b32 v{dst}, v{tmp}, v{dst}, vcc")
    A(f"v_min_u32 v{tmp}, 35, v{vLane}")
    A(f"v_add_u32 v{dst}, v{dst}, v{tmp}")
    A(f"v_lshlrev_b32 v{dst}, 2, v{dst}")
    A(f"v_add_u32 v{dst}, {F_P}, v{dst}")


def poll_addr_k(A, dst):
    A(f"s_lshl_b32 s{sT0}, s{sC}, 8")
    A(f"s_add_u32 s{sT0}, s{sT0}, {F_K}")
    A(f"v_lshlrev_b32 v{dst}, 2, v{vLane}")
    A(f"v_add_u32 v{dst}, s{sT0}, v{dst}")


def poll_addr_a(A, dst, base=F_A):
    A(f"v_and_b32 v{dst}, 7, v{vLane}")
    A(f"v_lshlrev_b32 v{dst}, 2, v{dst}")
    A(f"s_lshl_b32 s{sT0}, s{sMT}, 7")
    A(f"s_lshl_b32 s{sT1}, s{sW}, 5")
    A(f"s_add_u32 s{sT0}, s{sT0}, s{sT1}")
    if base:
        A(f"s_add_u32 s{sT0}, s{sT0}, {base}")
    A(f"v_add_u32 v{dst}, s{sT0}, v{dst}")


def spin(A, vaddr, vtmp, name, spin_max=200000):
    lab, done = A.new_label("spin" + name), A.new_label("sdone" + name)
    A(f"s_mov_b32 s{sT3}, 0")
    A.label(lab)
    A(f"buffer_load_dword v{vtmp}, v{vaddr}, {s(SRD_FLG,4)}, 0 offen sc1")
    A(f"s_add_u32 s{sT3}, s{sT3}, 1")
    A("s_waitcnt vmcnt(0)")
    A(f"v_cmp_ne_u32 vcc, s{sTag}, v{vtmp}")
    A(f"s_cbranch_vccz {done}")
    A(f"s_cmp_lt_u32 s{sT3}, {spin_max}")
    A(f"s_cbranch_scc1 {lab}")
    A.label(done)


def poll(reg):
    return f"buffer_load_dword v{reg}, v{reg}, {s(SRD_FLG,4)}, 0 offen sc1"


def check(A, side, reg, addr_fn, name):
    slow, ok = A.new_label("slow" + name), A.new_label("ok" + name)

    def emit_slow(B):
        B.label(slow)
        addr_fn(B)
        spin(B, 2, 3, name)
        B(f"s_branch {ok}")
    side.append(emit_slow)
    return f"v_cmp_ne_u32 vcc, s{sTag}, v{reg}\ns_nop 0\ns_cbranch_vccnz {slow}\n{ok}:"


def publish(tag, base):
    return (f"@wait {tag}\ns_lshl_b32 s{sT0}, s{sGid}, 2\ns_add_u32 s{sT0}, s{sT0}, {base}\n" + flag_store(sT0))


class W2Stream:
    def __init__(self):
        self.n = 0

    def adv(self, q):
        if q < 27:
            return (f"s_add_u32 s{sW2cur}, s{sW2cur}, 2048\ns_cmp_eq_u32 s{sW2cur}, s{sW2hi}\n"
                    f"s_cselect_b32 s{sW2cur}, s{sW2lo}, s{sW2cur}")
        if q == 27:
            return f"s_mov_b32 s{sW2cur}, s{sW2o}"
        return f"s_add_u32 s{sW2cur}, s{sW2cur}, 2048"

    def next(self):
        q, ns = self.n >> 1, self.n & 1
        r = w2reg(q)
        l = f"buffer_load_dwordx4 {r(ns)}, v{vW2a if ns == 0 else vW2b}, {s(SRD_W2,4)}, s{sW2cur} offen sc1"
        pre = "" if (ns == 1 or q == 0) else self.adv(q - 1) + "\n"
        self.n += 1
        return pre + l


def cf_items(t, b):
    c = vCS + 4 * b
    return [f"v_add_f32 v{c}, v{c}, v{c+1}",
            f"v_add_f32 v{c+2}, v{c+2}, v{c+3}",
            f"v_add_f32 v{c}, v{c}, v{c+2}",
            f"v_cvt_pk_bf16_f32 v{c+1}, v{c}, v{c}",
            f"v_and_b32 v{c+1}, s{sMask}, v{c+1}",
            f"v_sub_f32 v{c}, v{c}, v{c+1}",
            f"v_cvt_pk_bf16_f32 v{vCF+4*b}, v{c+1}, v{c}"]


def cs_read(t, b):
    return f"ds_read_b128 {v(vCS+4*b,4)}, v{vCSr} offset:{512*t}"


def epiF_items(t):
    ac = accF(t)
    L = []
    for j in range(0, 8, 2):
        L.append(f"v_max_f32 v{ac+j}, 0, v{ac+j}")
        L.append(f"v_mul_f32 v{ac+8+j}, v{vR2}, v{ac+8+j}")
        L.append(f"v_max_f32 v{ac+j+1}, 0, v{ac+j+1}")
        L.append(f"v_mul_f32 v{ac+8+j+1}, v{vR2}, v{ac+8+j+1}")
        L.append(f"v_mul_f32 v{ac+j}, v{ac+j}, v{ac+8+j}")
        L.append(f"v_mul_f32 v{ac+j+1}, v{ac+j+1}, v{ac+8+j+1}")
        L.append(f"v_cvt_pk_bf16_f32 v{ac+j//2}, v{ac+j}, v{ac+j+1}")
    L.append(f"s_add_u32 s{sT2}, s{sFo}, {1024*t}\n"
             f"buffer_store_dwordx4 {v(ac,4)}, v{vL16}, {s(SRD_ACT,4)}, s{sT2} offen sc1  ##f")
    return L


LOG2E = "0x3fb8aa3b"
EPS6 = "0x358637bd"
NEGEL = "0xb5c1a2a0"


def phi_items(src, scale, ta, tb, dst):
    E = vE
    L = []
    for i in range(2):
        L.append(f"v_fma_f32 v{tb+i}, v{src+i}, v{scale[i]}, v{E}")
    for i in range(2):
        L.append(f"v_fma_f32 v{ta+i}, v{tb+i}, v{E+1}, v{E+2}")
    for i in range(2):
        L.append(f"v_exp_f32 v{ta+i}, v{ta+i} clamp")
    for i in range(2):
        L.append(f"v_max_f32 v{tb+i}, v{E}, v{tb+i}")
    for i in range(2):
        L.append(f"v_add_f32 v{ta+i}, v{ta+i}, v{tb+i}")
    L.append(f"v_cvt_pk_bf16_f32 v{dst}, v{ta}, v{ta+1}")
    return L


def kv_items(side):
    E = vE
    RS = ACCQ
    L = [st_check(side),
         f"v_cndmask_b32 v{vM}, 0, v{vST}, {s(sLO,2)}",
         f"v_mul_f32 v{vR2}, v{vST+1}, v{vST+1}",
         f"v_and_b32 v2, 31, v{vLane}\nv_lshlrev_b32 v2, 2, v2\ns_lshl_b32 s{sT0}, s{sW}, 7\n"
         f"s_add_u32 s{sT0}, s{sT0}, {RSTD}\nv_add_u32 v2, s{sT0}, v2\nds_write_b32 v2, v{vST+1}"]
    L += cf_items(8, 0)
    L.append(f"v_mfma_f32_32x32x16_bf16 {v(ACCK,16)}, {v(vM,4)}, {v(vCF,4)}, {v(ACCK,16)}")
    L.append(f"v_lshrrev_b32 v2, 5, v{vLane}\nv_lshlrev_b32 v2, 4, v2\ns_lshl_b32 s{sT0}, s{sW}, 7\n"
             f"s_add_u32 s{sT0}, s{sT0}, {RSTD}\nv_add_u32 v2, s{sT0}, v2\n" +
             "\n".join(f"ds_read_b128 {v(RS+4*g,4)}, v2 offset:{32*g}" for g in range(4)))
    L += cf_items(9, 1)
    L.append(f"v_mfma_f32_32x32x16_bf16 {v(ACCV,16)}, {v(vM,4)}, {v(vCF+4,4)}, {v(ACCV,16)}")
    L.append(f"v_mov_b32 v{E}, {EPS6}")
    L.append(f"v_mov_b32 v{E+1}, {LOG2E}")
    L.append(f"v_mov_b32 v{E+2}, {NEGEL}")
    L.append(f"v_mov_b32 v{E+3}, 0x3f803f80")
    L.append(f"v_and_b32 v3, 31, v{vLane}\nv_cmp_eq_u32 {s(sL28,2)}, 28, v3")
    for j in range(0, 16, 2):
        ta = E + 4 + 4 * ((j >> 1) & 1)
        L += phi_items(ACCK + j, (RS + j, RS + j + 1), ta, ta + 2, PK + j // 2)
    v0_ = ACCV
    for j in range(0, 16, 2):
        L.append(f"v_mul_f32 v{v0_+j}, v{v0_+j}, v{RS+j}")
        L.append(f"v_mul_f32 v{v0_+j+1}, v{v0_+j+1}, v{RS+j+1}")
        L.append(f"v_cvt_pk_bf16_f32 v{v0_+j//2}, v{v0_+j}, v{v0_+j+1}")
        L.append(f"v_cndmask_b32 v{v0_+j//2}, v{v0_+j//2}, v{E+3}, {s(sL28,2)}")
    KV = ACCK
    for u in range(2):
        C = "0" if u == 0 else v(KV, 16)
        L.append(f"v_mfma_f32_32x32x16_bf16 {v(KV,16)}, {v(PK+4*u,4)}, {v(v0_+4*u,4)}, {C}")
    Wr = [f"s_lshl_b32 s{sT0}, s{sW}, 12\ns_add_u32 s{sT0}, s{sT0}, {KVX}\nv_add_u32 v2, s{sT0}, v{vL16}\n" +
          "\n".join(f"ds_write_b128 v2, {v(KV+4*g,4)} offset:{1024*g}" for g in range(4))]
    R = [f"s_lshl_b32 s{sT0}, s{sW}, 10\ns_add_u32 s{sT0}, s{sT0}, {KVX}\nv_add_u32 v2, s{sT0}, v{vL16}\n" +
         "\n".join(f"ds_read_b128 {v(KV+4*w,4)}, v2 offset:{4096*w}" for w in range(4))]
    for (x, y) in ((0, 4), (8, 12), (0, 8)):
        for i in range(4):
            R.append(f"v_add_f32 v{KV+x+i}, v{KV+x+i}, v{KV+y+i}")
    R.append(kv_store(KV))
    return L, Wr, R


def kv_store(KV):
    return (f"s_lshl_b32 s{sT3}, s{sC}, 4\ns_add_u32 s{sT3}, s{sT3}, s{sR}\ns_lshl_b32 s{sT3}, s{sT3}, 2\n"
            f"s_add_u32 s{sT3}, s{sT3}, s{sW}\ns_lshl_b32 s{sT3}, s{sT3}, 10\n"
            f"buffer_store_dwordx4 {v(KV,4)}, v{vL16}, {s(SRD_KVP,4)}, s{sT3} offen sc1  ##kv")


def flag_rowtile(tag, base):
    return (f"@wait {tag}\ns_lshl_b32 s{sT2}, s{sR}, 8\ns_lshr_b32 s{sT3}, s{sW}, 1\ns_lshl_b32 s{sT3}, s{sT3}, 7\n"
            f"s_add_u32 s{sT2}, s{sT2}, s{sT3}\ns_lshl_b32 s{sT3}, s{sC}, 3\ns_add_u32 s{sT2}, s{sT2}, s{sT3}\n"
            f"s_and_b32 s{sT3}, s{sW}, 1\ns_lshl_b32 s{sT3}, s{sT3}, 2\ns_add_u32 s{sT2}, s{sT2}, s{sT3}\n"
            + (f"s_add_u32 s{sT2}, s{sT2}, {base}\n" if base else "") + flag_store(sT2))


def flag_k():
    return (f"@wait kv\ns_lshl_b32 s{sT2}, s{sC}, 8\ns_lshl_b32 s{sT3}, s{sR}, 4\ns_add_u32 s{sT2}, s{sT2}, s{sT3}\n"
            f"s_lshl_b32 s{sT3}, s{sW}, 2\ns_add_u32 s{sT2}, s{sT2}, s{sT3}\ns_add_u32 s{sT2}, s{sT2}, {F_K}\n"
            + flag_store(sT2))


def cs_export(reg, idx, tmp):
    return f"v_accvgpr_read_b32 v{tmp}, a{reg}\nds_write_b32 v{vCSw}, v{tmp} offset:{512*idx}"


def phase1(A, stamp, side, w2):
    cap, capA = PAR["cap"], PAR["capA"]
    W = Weave()
    pos = {}
    accA = [ACCK, ACCV]
    for n in range(28):
        j, p = divmod(n, 4)
        lo = W.n()
        for t in range(2):
            W.add(mf(v(accA[t], 16), a(xf(j, p), 4), a(kf(n, t), 4), n == 0), capA)
            if p == 0:
                W.add(m16(aCS + 4 * t, a(kf(n, t), 4), j == 0), 2)
        pos[n] = (lo, W.n())
    for n in range(28, 56):
        g, p = divmod(n, 4)
        j = g - 7
        lo = W.n()
        for t in range(7):
            W.add(mf(v(accF(t), 16), a(wf(p & 1, t), 4), a(xf(j, p), 4), n == 28), cap)
            if p == 0:
                W.add(m16(aCS + 4 * t, a(wf(0, t), 4), j == 0), 2)
        pos[n] = (lo, W.n())
    fold_at = {PAR["f0"] + PAR["fstep"] * t: t for t in range(7)}
    foldg = {}
    for i in range(28):
        jj, p = divmod(i, 4)
        lo = W.n()
        if i in fold_at:
            t = fold_at[i]
            foldg[t] = W.add(mf(v(accF(t), 16), v(vCF + 4 * (t & 1), 4), v(vM, 4), False), cap)
        W.add(mf(v(ACCQ, 16), a(qf(i), 4), a(xf(jj, p), 4), i == 0), cap)
        if p == 0:
            W.add(m16(aCSQ, a(qf(i), 4), jj == 0), 2)
        pos[56 + i] = (lo, W.n())
    end = W.n()
    P = lambda key, off=0: pos[PAR[key]][0] + off
    for n in range(26):
        lo, hi = pos[n]
        W.plan(readsA(n + 2), lo, [3, 0, 2] if (n & 3) == 0 else [3, 2])
    R = readsB(28)
    W.plan(R[:8], pos[26][0], [4, 4])
    W.plan(R[8:], pos[27][0] + 1, [6])
    for n in range(28, 55):
        lo, hi = pos[n]
        cnt = [3, 0, 3, 0, 3, 0, 3, 0, 2] if (n & 3) == 0 else [3, 3, 3, 3, 2]
        W.plan(readsB(n + 1), lo, cnt)
    lo, hi = pos[55]
    W.plan(readsC(0) + readsC(1) + readsC(2), lo + 1, [2, 2, 2])
    for i in range(25):
        W.pin(pos[56 + i][1] - 1 if (i & 3) else pos[56 + i][1] - 2, "\n".join(readsC(i + 3)))
    bar = {}
    for g in range(14):
        n = 4 * g + (2 if g < 7 else 3)
        bar[g] = pos[n][0]
        lg = g in (6, 13) or n == PAR["kvw"]
        W.before(bar[g], f"@wait G{g+1}" + (" lgkm0" if lg else ""))
        W.before(bar[g], "s_barrier")
    U2 = group_units(2)
    for k, u in enumerate(U2):
        W.pin(pos[0][0] + (k * (pos[1][1] - pos[0][0])) // len(U2), unit_item(u))
    for g in range(12):
        W.put_dma(group_units(g + 3), bar[g], bar[g + 1])
    L, St = rp_items()
    W.pin(P("sts"), st_store())
    W.pin(P("rpl"), L[0])
    W.pin(P("rps"), St[0])
    W.pin(P("pubP"), publish("rps", F_P))
    W.pin(P("ldS"), st_load())
    W.pin(P("polW", 6), poll(vPollW))
    if not OPT.get("nopf"):
        W.pin(P("pfB"), f"buffer_load_dword v251, v{vPB}, {s(SRD_GU,4)}, 0 offen")
        W.pin(P("pfC", 6), f"buffer_load_dword v252, v{vPC}, {s(SRD_QKV,4)}, 0 offen")
        if not OPT.get("nopfw"):
            W.pin(P("pfW", 6), f"buffer_load_dword v253, v{vPW}, {s(SRD_W2,4)}, 0 offen sc1\n"
                               f"v_add_u32 v{vPW}, 8192, v{vPW}\n"
                               f"buffer_load_dword v254, v{vPW}, {s(SRD_W2,4)}, 0 offen sc1")
    W.pin(pos[25][0], cs_export(aCS, 8, vE))
    W.pin(pos[25][0] + 1, cs_export(aCS + 4, 9, vE + 1))
    z = [f"v_mov_b32 v{vCF+4*b+k}, 0" for b in range(2) for k in range(1, 4)]
    z += [f"v_mov_b32 v{vM+k}, 0" for k in range(1, 4)]
    W.spread(z, pos[20][0], pos[24][1])
    W.pin(pos[27][0], cs_read(8, 0))
    W.pin(pos[27][0], cs_read(9, 1))
    K1, Kw, K2 = kv_items(side)
    W.spread(K1, P("kv0"), P("kvw") - 1)
    W.pin(P("kvw") - 1, Kw[0])
    assert P("kvw") in bar.values(), "kvw must be a barrier position"
    W.spread(K2, P("kvw") + 1, P("kvw") + 12)
    W.pin(P("pubK"), flag_k())
    W.pin(P("polK", 1), poll(vPollK))
    W.pin(P("chkW", 3), check(A, side, vPollW, lambda B: poll_addr_w(B, 2, 3), "W"))
    W.spread([w2.next() for _ in range(8)], P("w2a"), P("w2a") + 30)
    W.spread([w2.next() for _ in range(8)], P("w2b"), P("w2b") + 30)
    cs = [cs_export(aCS + 4 * t, t, vE + (t & 3)) for t in range(7)]
    W.spread(cs, pos[53][0] + 2, pos[54][1])
    W.pin(pos[55][0], cs_read(0, 0))
    W.pin(pos[55][0], cs_read(1, 1))
    fe = lambda t: foldg[t + 1] + 2 if t < 6 else end
    for t in range(7):
        g = foldg[t]
        prev = foldg[t - 1] + 1 if t else pos[55][0] + 1
        if t == 0:
            W.spread(cf_items(t, 0), pos[55][0] + 2, g)
        else:
            W.spread(cf_items(t, t & 1), prev, g)
        if t + 2 < 7:
            W.pin(g, cs_read(t + 2, t & 1))
    for t in range(7):
        W.spread(epiF_items(t), foldg[t] + 2, fe(t))
    it = [w2.next() for _ in range(20)]
    W.spread(it, pos[57][0], end)
    kp0 = fe(3)
    W.pin(kp0, check(A, side, vPollK, lambda B: poll_addr_k(B, 2), "K"))
    W.spread(kvp_loads(), kp0 + 1, end)
    W.pin(pos[82][0], cs_export(aCSQ, 7, vE + 4))
    for n, key in ((27, ("st", 0)), (55, ("st", 1)), (39, ("st", 2)), (47, ("st", 3)), (13, ("st", 4))):
        st = stamp.text(key)
        if st:
            W.pin(pos[n][1] - 1, st)
    A("@wait G0")
    A("s_barrier")
    stamp(A, 1)
    A.ext(readsA(0))
    A.ext(readsA(1))
    W.emit(A)
    if OPT.get("report"):
        print("phase1 load:", W.load_report())
```

```python
from tlib import *
import u1 as q1
from u1 import (ACT_BYTES, F_A, F_O, F_K, EPOCH, SRD_FLG, SRD_KVP, SRD_ACT, sMT, sNT, sTag, sOUTp, sW, sC, sR, sFo,
                w2reg, spin, flag_store, vL16, vLane, vE, ACCQ, vST, vCF, vM, KFX, sLO)

sXp = 4
SRD_X, SRD_OUT = 24, 40
sT0, sT1, sT2, sT3 = 48, 49, 50, 51
sHcur, sHlo, sHhi, sPQ = 56, 57, 58, 59
vT = 2
vHA, vHB = 4, 5
vXR = 16
vOO = 14
vACC = 32
KP = 32
NUM = 96
KF = 112
FIN = 0
OPT = {"nh": 8, "pre": 6, "opoll": 14, "ochk": 19, "pubo": 2, "w2x": 12, "w2y": 14}


def acc(j):
    return vACC + 16 * j


def hslot(i, off=0, n=4):
    i %= OPT["nh"]
    if i < 6:
        return v(96 + 8 * i + off, n)
    return v(192 + 8 * (i - 6) + off, n)


class Items:
    def __init__(self):
        self.L = []
    def __call__(self, s):
        self.L.append(s)
    def ext(self, l):
        self.L.extend(l)


def merge(A, main, extra, start=0):
    n = len(main) - start
    k = 0
    for i, it in enumerate(main):
        A(it)
        if i >= start:
            want = (len(extra) * (i - start + 1)) // n
            while k < want:
                A(extra[k]); k += 1
    while k < len(extra):
        A(extra[k]); k += 1


def h_load(kk):
    return [f"buffer_load_dwordx4 {hslot(kk,0)}, v{vHA}, {s(SRD_ACT,4)}, s{sHcur} offen sc1  ##h{kk}",
            f"buffer_load_dwordx4 {hslot(kk,4)}, v{vHB}, {s(SRD_ACT,4)}, s{sHcur} offen sc1  ##h{kk}"]


def h_adv(kk):
    if kk < 27:
        return f"s_add_u32 s{sHcur}, s{sHcur}, 1024\ns_cmp_eq_u32 s{sHcur}, s{sHhi}\ns_cselect_b32 s{sHcur}, s{sHlo}, s{sHcur}"
    if kk == 27:
        return f"s_mov_b32 s{sHcur}, s{sPQ}"
    return f"s_add_u32 s{sHcur}, s{sHcur}, 1024"


def tail(A, stamp, side, w2, lend):
    E = vE
    A("s_waitcnt lgkmcnt(0)")
    A("s_barrier")
    A(q1.cs_read(7, 0))
    stamp(A, 3)
    I = Items()
    I.ext(q1.cf_items(7, 0))
    I(f"v_mfma_f32_32x32x16_bf16 {v(ACCQ,16)}, {v(vCF,4)}, {v(vM,4)}, {v(ACCQ,16)}")
    I(f"v_mov_b32 v{E}, {q1.EPS6}")
    I(f"v_mov_b32 v{E+1}, {q1.LOG2E}")
    I(f"v_mov_b32 v{E+2}, {q1.NEGEL}")
    for j in range(0, 16, 2):
        ta = E + 4 + 4 * ((j >> 1) & 1)
        I.ext(q1.phi_items(ACCQ + j, (vST + 1, vST + 1), ta, ta + 2, ACCQ + j // 2))
    I(f"v_cndmask_b32 v{ACCQ+6}, 0, v{ACCQ+6}, {s(sLO,2)}")
    I(f"v_cndmask_b32 v{ACCQ+7}, 0, v{ACCQ+7}, {s(sLO,2)}")
    merge(A, I.L, [w2.next() for _ in range(OPT["w2x"])], start=2)
    A(q1.flag_rowtile("f", F_A))
    stamp(A, 4)
    q1.poll_addr_a(A, q1.vPollA)
    A(q1.poll(q1.vPollA))
    I = Items()
    for stp in (1, 2, 4, 8):
        for p in range(0, 16, 2 * stp):
            for i in range(4):
                I(f"v_add_f32 v{KP+4*p+i}, v{KP+4*p+i}, v{KP+4*(p+stp)+i}")
    I(f"v_cvt_pk_bf16_f32 v{KP+4}, v{KP}, v{KP+1}")
    I(f"v_cvt_pk_bf16_f32 v{KP+5}, v{KP+2}, v{KP+3}")
    I(f"s_lshr_b32 s{sT0}, s{sW}, 1\ns_lshl_b32 s{sT0}, s{sT0}, 10\ns_and_b32 s{sT1}, s{sW}, 1\ns_lshl_b32 s{sT1}, s{sT1}, 3\n"
      f"s_add_u32 s{sT0}, s{sT0}, s{sT1}\ns_add_u32 s{sT0}, s{sT0}, {KFX}\nv_add_u32 v{vT}, s{sT0}, v{vL16}\n"
      f"ds_write_b64 v{vT}, {v(KP+4,2)}")
    merge(A, I.L, [w2.next() for _ in range(OPT["w2y"])], start=8)
    A("s_waitcnt lgkmcnt(0)")
    A("s_barrier")
    A(f"v_add_u32 v{vT}, {KFX}, v{vL16}")
    for u in range(2):
        A(f"ds_read_b128 {v(KF+4*u,4)}, v{vT} offset:{1024*u}")
    for u in range(2):
        A(f"v_mfma_f32_32x32x16_bf16 {v(NUM,16)}, {v(KF+4*u,4)}, {v(ACCQ+4*u,4)}, {'0' if u == 0 else v(NUM,16)}")
    rest = []
    while w2.n < 72:
        rest.append(w2.next())
    I = Items()
    n = NUM
    I(f"v_mov_b32 v{vT}, v{n+12}\nv_mov_b32 v{vT+1}, v{n+12}\nv_permlane32_swap_b32 v{vT}, v{vT+1}\n"
      f"v_add_f32 v{vT}, {q1.EPS6}, v{vT+1}\nv_rcp_f32 v{vT}, v{vT}")
    for j in range(0, 16, 2):
        I(f"v_mul_f32 v{n+j}, v{n+j}, v{vT}\nv_mul_f32 v{n+j+1}, v{n+j+1}, v{vT}\n"
          f"v_cvt_pk_bf16_f32 v{n+j//2}, v{n+j}, v{n+j+1}")
    I(f"v_cndmask_b32 v{n+6}, 0, v{n+6}, {s(sLO,2)}\nv_cndmask_b32 v{n+7}, 0, v{n+7}, {s(sLO,2)}")
    for x in rest[:4]:
        A(x)
    A.ext(I.L)
    A(f"s_mul_i32 s{sT2}, s{sC}, {5*1024}\ns_sub_u32 s{sT2}, s{sFo}, s{sT2}\ns_add_u32 s{sT2}, s{sT2}, {112*1024}")
    for u in range(2):
        A(f"buffer_store_dwordx4 {v(n+4*u,4)}, v{vL16}, {s(SRD_ACT,4)}, s{sT2} offen offset:{1024*u} sc1  ##o")
    for x in rest[4:]:
        A(x)
    stamp(A, 5)
    idle = A.new_label("noph2")

    def emit_idle(B):
        B.label(idle)
        B("s_waitcnt vmcnt(0)")
        B(q1.flag_rowtile("o", F_O).replace("@wait o\n", ""))
        B(f"s_branch {lend}")
    side.append(emit_idle)
    A(f"s_cmp_eq_u32 s{sNT}, 7")
    A(f"s_cbranch_scc1 {idle}")


def phase2(A, stamp, side):
    A(f"s_mul_i32 s{sT0}, s{sMT}, {2*144*1024}")
    A(f"s_mul_i32 s{sT1}, s{sW}, {28*1024}")
    A(f"s_add_u32 s{sHlo}, s{sT0}, s{sT1}")
    A(f"s_add_u32 s{sHhi}, s{sHlo}, {28*1024}")
    A(f"s_lshl_b32 s{sT1}, s{sW}, 13")
    A(f"s_add_u32 s{sPQ}, s{sT0}, s{sT1}")
    A(f"s_add_u32 s{sPQ}, s{sPQ}, {112*1024}")
    A(f"s_lshl_b32 s{sT1}, s{sNT}, 12")
    A(f"s_add_u32 s{sHcur}, s{sHlo}, s{sT1}")
    A(f"s_and_b32 s{sT0}, s{sW}, 1")
    A(f"s_mul_i32 s{sT0}, s{sT0}, {144*1024}")
    A(f"s_sub_u32 s{sT1}, {144*1024}, s{sT0}")
    A(f"v_add_u32 v{vHA}, s{sT0}, v{vL16}")
    A(f"v_add_u32 v{vHB}, s{sT1}, v{vL16}")
    A(q1.check(A, side, q1.vPollA, lambda B: q1.poll_addr_a(B, 2), "A"))
    stamp(A, 7)
    nxt = 0
    NH = OPT["nh"]

    def issue_h():
        nonlocal nxt
        if nxt > 0:
            A(h_adv(nxt - 1))
        A.ext(h_load(nxt))
        nxt += 1
    for _ in range(OPT["pre"]):
        issue_h()
    srd(A, SRD_X, sXp, 2048 * 896)
    srd(A, SRD_OUT, sOUTp, 2048 * 896)
    A(f"v_and_b32 v{vOO}, 31, v{vLane}")
    A(f"v_mul_u32_u24 v{vOO}, 896, v{vOO}")
    A(f"s_lshl_b32 s{sT0}, s{sMT}, 1")
    A(f"s_and_b32 s{sT1}, s{sW}, 1")
    A(f"s_add_u32 s{sT0}, s{sT0}, s{sT1}")
    A(f"s_mul_i32 s{sT0}, s{sT0}, {32*896}")
    A(f"s_lshl_b32 s{sT1}, s{sNT}, 7")
    A(f"s_add_u32 s{sT0}, s{sT0}, s{sT1}")
    A(f"s_lshr_b32 s{sT1}, s{sW}, 1")
    A(f"s_lshl_b32 s{sT1}, s{sT1}, 6")
    A(f"s_add_u32 s{sT0}, s{sT0}, s{sT1}")
    A(f"v_add_u32 v{vOO}, s{sT0}, v{vOO}")
    A(f"v_lshrrev_b32 v{vT}, 5, v{vLane}")
    A(f"v_lshlrev_b32 v{vT}, 3, v{vT}")
    A(f"v_add_u32 v{vT}, v{vT}, v{vOO}")
    for g in range(4):
        A(f"buffer_load_dwordx2 {v(vXR+2*g,2)}, v{vT}, {s(SRD_X,4)}, 0 offen offset:{16*g}")
    vP = 6

    def addr_o(B, d):
        q1.poll_addr_a(B, d, F_O)

    stamp(A, ("h", "i"))
    for kk in range(36):
        stamp(A, ("h", kk))
        r = w2reg(kk)
        for ns in range(2):
            for ss in range(2):
                j = 2 * ns + ss
                C = "0" if kk == 0 else v(acc(j), 16)
                A(f"v_mfma_f32_32x32x16_bf16 {v(acc(j),16)}, {r(ns)}, {hslot(kk,4*ss)}, {C}")
        if kk == OPT["ochk"]:
            A(q1.check(A, side, vP, lambda B: addr_o(B, 2), "O"))
            stamp(A, 6)
        k = 0
        while nxt < 36 and nxt < kk + 1 + NH and k < 2:
            assert nxt < 28 or kk >= OPT["ochk"], (nxt, kk)
            issue_h(); k += 1
        if kk == OPT["pubo"]:
            A(q1.flag_rowtile("o", F_O))
        if kk == OPT["opoll"]:
            addr_o(A, vP)
            A(q1.poll(vP))
    stamp(A, 8)
    assert nxt == 36
    for j in range(1, 4):
        A(f"s_xor_b32 s{sT0}, s{sW}, {j}")
        A(f"s_mul_i32 s{sT0}, s{sT0}, {3*4096}")
        A(f"v_add_u32 v{vT}, s{sT0}, v{vL16}")
        for g in range(4):
            A(f"ds_write_b128 v{vT}, {v(acc(j)+4*g,4)} offset:{FIN + (j-1)*4096 + g*1024}")
    A(f"s_mul_i32 s{sT0}, s{sW}, {3*4096}")
    A(f"v_add_u32 v{vT}, s{sT0}, v{vL16}")
    A("s_waitcnt lgkmcnt(0)")
    A("s_barrier")
    R = 96
    for j in range(3):
        for g in range(4):
            A(f"ds_read_b128 {v(R+16*j+4*g,4)}, v{vT} offset:{FIN + j*4096 + g*1024}")
    a0 = acc(0)
    for g in range(4):
        for e in range(2):
            A(f"v_lshlrev_b32 v{vT+1}, 16, v{vXR+2*g+e}")
            A(f"v_add_f32 v{a0+4*g+2*e}, v{a0+4*g+2*e}, v{vT+1}")
            A(f"v_and_b32 v{vT+1}, 0xffff0000, v{vXR+2*g+e}")
            A(f"v_add_f32 v{a0+4*g+2*e+1}, v{a0+4*g+2*e+1}, v{vT+1}")
    for j in range(3):
        for i in range(0, 16, 2):
            A(f"v_pk_add_f32 {v(a0+i,2)}, {v(a0+i,2)}, {v(R+16*j+i,2)}")
    P = vXR
    for g in range(4):
        for e in range(2):
            A(f"v_cvt_pk_bf16_f32 v{P+2*g+e}, v{a0+4*g+2*e}, v{a0+4*g+2*e+1}")
    A(f"v_lshrrev_b32 v{vT}, 5, v{vLane}")
    A(f"v_lshlrev_b32 v{vT}, 4, v{vT}")
    A(f"v_add_u32 v{vT}, v{vT}, v{vOO}")
    for pr in range(2):
        A(f"v_permlane32_swap_b32 v{P+4*pr}, v{P+4*pr+2}")
        A(f"v_permlane32_swap_b32 v{P+4*pr+1}, v{P+4*pr+3}")
    for pr in range(2):
        A(f"buffer_store_dwordx4 {v(P+4*pr,4)}, v{vT}, {s(SRD_OUT,4)}, 0 offen offset:{32*pr}")
    skip = A.new_label("noepoch")
    A(f"s_or_b32 s{sT0}, s2, s{sW}")
    A(f"s_cmp_lg_u32 s{sT0}, 0")
    A(f"s_cbranch_scc1 {skip}")
    A(f"s_mov_b32 s{sT0}, {EPOCH}")
    A(flag_store(sT0))
    A.label(skip)
```

```python
import sys, argparse
sys.path.insert(0, "gen")
from tlib import *
import u1 as q1, u2 as q2

PROF_OFF = 0x4000000


class Stamp:
    def __init__(self, enable, named=None, only=None):
        self.enable = enable
        self.named = named or {}
        self.only = only
    def text(self, idx):
        if isinstance(idx, tuple):
            idx = self.named.get(idx)
            if idx is None:
                return None
        elif self.only is not None and idx not in self.only:
            return None
        if not self.enable:
            return None
        return f"s_memtime s[96:97]\ns_waitcnt lgkmcnt(0)\ns_mov_b32 s{84+idx}, s96"
    def __call__(self, A, idx):
        t = self.text(idx)
        if t:
            A(t)
        if idx == 0 and getattr(self, "rt", False):
            A("s_memrealtime s[96:97]\ns_waitcnt lgkmcnt(0)\ns_mov_b32 s88, s96")
    def flush_dbg(self, A):
        A("s_memrealtime s[96:97]")
        A("s_load_dwordx2 s[16:17], s[0:1], 64")
        A("s_waitcnt lgkmcnt(0)")
        A("s_and_b32 s17, s17, 0xffff")
        A("s_mov_b32 s18, 256")
        A("s_mov_b32 s19, 0x20000")
        A("s_mov_b64 exec, 1")
        A("v_mov_b32 v2, 0")
        def amax(src, off):
            A(f"v_mov_b32 v3, {src}")
            A(f"buffer_atomic_umax v3, v2, s[16:19], 0 offen offset:{4*off}")
        amax("s96", 0)
        A("s_not_b32 s20, s88"); amax("s20", 1)
        amax("s88", 2)
        A("s_sub_u32 s20, s95, s84"); amax("s20", 3)
        A("s_sub_u32 s20, s85, s84"); amax("s20", 14)
        A("s_sub_u32 s20, s89, s84"); amax("s20", 15)
        A("v_readfirstlane_b32 s21, v0")
        A("s_lshr_b32 s21, s21, 6")
        A("s_lshl_b32 s22, s2, 2")
        A("s_add_u32 s21, s21, s22")
        A("s_cmp_eq_u32 s21, 400")
        A("s_cbranch_scc0 L_dbgend")
        for k, i in enumerate((1, 2, 9, 10, 3, 5, 7, 6, 8, 11)):
            A(f"s_sub_u32 s20, s{84+i}, s84")
            amax("s20", 4 + k)
        A.label("L_dbgend")
        A("s_waitcnt vmcnt(0)")
    def flush(self, A, n, sws):
        if not self.enable:
            return
        if getattr(self, "dbg", False):
            return self.flush_dbg(A)
        srd(A, 16, sws, 0x100000, PROF_OFF)
        A("v_lshrrev_b32 v2, 6, v0")
        A("v_lshlrev_b32 v2, 6, v2")
        A("s_lshl_b32 s96, s2, 8")
        A("v_add_u32 v2, s96, v2")
        for i in range(n):
            A(f"v_mov_b32 v3, s{84+i}")
            A(f"buffer_store_dword v3, v2, s[16:19], 0 offen offset:{4*i}")
        A("s_memrealtime s[96:97]")
        A("s_waitcnt lgkmcnt(0)")
        A("v_mov_b32 v3, s96")
        A(f"buffer_store_dword v3, v2, s[16:19], 0 offen offset:52")
        A("s_waitcnt vmcnt(0)")


def build(mode):
    kern = NAME + "_kernel"
    en = mode != ""
    if mode == "p":
        st = Stamp(en, named={("p", i): i + 2 for i in range(5)} | {("st", 4): 7, ("st", 0): 8, ("st", 2): 9, ("st", 1): 10},
                   only=(0, 1, 11))
    elif mode == "r":
        st = Stamp(en, only=(0, 1, 11))
        st.rt = True
    elif mode == "d":
        st = Stamp(en, named={("st", 0): 2, ("st", 1): 9}, only=(0, 1, 2, 3, 5, 6, 7, 8, 9, 10, 11))
        st.rt = True
        st.dbg = True
    elif mode == "h":
        st = Stamp(en, named={("h", "i"): 1, ("h", 0): 2, ("h", 1): 3, ("h", 6): 4, ("h", 12): 5, ("h", 20): 6,
                              ("h", 28): 9}, only=(0, 7, 8, 11))
    else:
        st = Stamp(en, named={("st", 0): 2, ("st", 1): 9})
    A = Prog()
    side = []
    ex = "L_exit"
    lend = "L_end"
    A(khead(kern))
    q1.prologue(A, ex, st)
    w2 = q1.W2Stream()
    q1.phase1(A, st, side, w2)
    if mode in ("c", "d"):
        st(A, 10)
    if q1.OPT.get("exit1"):
        A("s_waitcnt vmcnt(0) lgkmcnt(0)")
        A(f"s_branch {lend}")
    q2.tail(A, st, side, w2, lend)
    q2.phase2(A, st, side)
    A(f"s_branch {lend}")
    rep = []
    lines = A.finalize(rep)
    B = Prog()
    for e in side:
        e(B)
    lines += B.finalize()
    C = Prog()
    C.label(lend)
    st(C, 11)
    st.flush(C, 12, q1.sWS)
    C.label(ex)
    C("s_endpgm")
    lines += C.finalize(rep)
    if q1.OPT.get("report"):
        for r in rep:
            print("nop", r)
    return lines


def main():
    ap = argparse.ArgumentParser()
    ap.add_argument("--out", default="U.s")
    ap.add_argument("--prof", default="", help="c|p|h")
    ap.add_argument("--par", default="")
    ap.add_argument("--p2", default="")
    ap.add_argument("--opt", default="")
    args = ap.parse_args()
    for o in args.opt.split(","):
        if o:
            q1.OPT[o] = True
    for kv in args.par.split(","):
        if kv:
            k, z = kv.split("=")
            assert k in q1.PAR
            q1.PAR[k] = int(z)
    for kv in args.p2.split(","):
        if kv:
            k, z = kv.split("=")
            assert k in q2.OPT
            q2.OPT[k] = int(z)
    lines = build(args.prof)
    hdr = f"; @launch grid=(256,1,1) block=(256,1,1) lds={q1.LDS_BYTES}"
    txt = (hdr + "\n" + '.amdgcn_target "amdgcn-amd-amdhsa--gfx950"\n.text\n' + text_of(lines) +
           '.section .rodata,"a"\n.p2align 6\n' + desc(NAME + "_kernel"))
    open(args.out, "w").write(txt)
    print("wrote", args.out, len(txt), "bytes")


main()
```
